```python
import torch

def _softmax(x, axis=-1):
    return torch.softmax(x, dim=axis)
def _gelu(x):
    return torch.nn.functional.gelu(x, approximate="tanh")
def _silu(x):
    return torch.nn.functional.silu(x)
def _sigmoid(x):
    return torch.sigmoid(x)
def _layernorm(x, axis=-1, eps=1e-5):
    m = x.mean(dim=axis, keepdim=True)
    v = x.var(dim=axis, keepdim=True, unbiased=False)
    return (x - m) / torch.sqrt(v + eps)
def _scatter_add(tgt, idx, src, axis=0):
    return tgt.clone().index_add_(axis, idx, src)
def _segment_sum(src, seg, n):
    out = torch.zeros((n,) + src.shape[1:], dtype=src.dtype)
    return out.index_add_(0, seg, src)
def _pad(x, pw):
    flat = tuple(v for pair in reversed(pw) for v in pair)
    return torch.nn.functional.pad(x, flat)

kernel_name = 'sequential_preLN__linear_attn_block__glu_gated_swiglu__prompt'

def setup_inputs():

    _w = (lambda a: (lambda t: t.to(torch.bfloat16) if t.is_floating_point() else t)(torch.as_tensor(a)))
    def _A_setup():
        B, S, D = 1, 2048, 512
        return {
            "x": _w((lambda *s: torch.randn(*s, dtype=torch.bfloat16) * 0.05)(B, S, D)),
            "wqkv": _w((lambda *s: torch.randn(*s, dtype=torch.bfloat16) * 0.05)(D, 3 * D)),
            "wo": _w((lambda *s: torch.randn(*s, dtype=torch.bfloat16) * 0.05)(D, D)),
        }
    _A_in = _A_setup()

    def _B_setup():
        B, S, D, F = 1, 2048, 512, 1792
        return {
            "x": _w((lambda *s: torch.randn(*s, dtype=torch.bfloat16) * 0.05)(B, S, D)),
            "w1": _w((lambda *s: torch.randn(*s, dtype=torch.bfloat16) * 0.2)(D, F) * (2.0 / D) ** 0.5),
            "w3": _w((lambda *s: torch.randn(*s, dtype=torch.bfloat16) * 0.2)(D, F) * (2.0 / D) ** 0.5),
            "w2": _w((lambda *s: torch.randn(*s, dtype=torch.bfloat16) * 0.2)(F, D) * (2.0 / F) ** 0.5),
        }
    _B_in = _B_setup()

    return {
        "A_x": _A_in["x"],
        "A_wqkv": _A_in["wqkv"],
        "A_wo": _A_in["wo"],
        "B_x": _B_in["x"],
        "B_w1": _B_in["w1"],
        "B_w3": _B_in["w3"],
        "B_w2": _B_in["w2"],
    }

def reference(A_x, A_wqkv, A_wo, B_x, B_w1, B_w3, B_w2):
    def _A_ref(x, wqkv, wo):
        B, S, D = x.shape
        H = 32; Dh = D // H
        qkv = (lambda x, *d: x.permute(*d))((x @ wqkv).reshape(B, S, 3, H, Dh), 2, 0, 3, 1, 4)
        q, k, v = qkv[0], qkv[1], qkv[2]
        phi = lambda t: torch.where(t > 0, t + 1, torch.exp(t)) + 1e-6
        pq, pk = phi(q), phi(k)
        kv = torch.einsum("bhsd,bhse->bhde", pk, v)
        z = torch.einsum("bhsd->bhd", pk)
        num = torch.einsum("bhqd,bhde->bhqe", pq, kv)
        den = torch.einsum("bhqd,bhd->bhq", pq, z)[..., None] + 1e-6
        o = num / den
        return (lambda x, *d: x.permute(*d))(o, 0, 2, 1, 3).reshape(B, S, D) @ wo

    def _B_ref(x, w1, w3, w2):
        gate = torch.einsum("bsd,df->bsf", x, w1)
        up = torch.einsum("bsd,df->bsf", x, w3)
        h = _silu(gate) * up
        out = torch.einsum("bsf,fd->bsd", h, w2)
        return out

    x = A_x
    h = x + _A_ref(_layernorm(x, axis=-1), A_wqkv, A_wo)
    h2 = h + _B_ref(_layernorm(h, axis=-1), B_w1, B_w3, B_w2)
    return h2
```

```python
import re

REG_RE = re.compile(r'(?<![\w.])([vas])(?:\[(\d+):(\d+)\]|(\d+))(?![\w])')
TRANS = ('v_exp_f32', 'v_log_f32', 'v_rcp_f32', 'v_rsq_f32', 'v_sqrt_f32', 'v_sin_f32', 'v_cos_f32')

def regs_of(op):
    out = set()
    op = op.strip()
    for m in REG_RE.finditer(op):
        k = m.group(1)
        if m.group(4) is not None:
            out.add((k, int(m.group(4))))
        else:
            for i in range(int(m.group(2)), int(m.group(3)) + 1):
                out.add((k, i))
    if re.search(r'\bvcc(_lo|_hi)?\b', op): out |= {('s', 'vcc')}
    if re.search(r'\bm0\b', op): out |= {('s', 'm0')}
    if re.search(r'\bexec(_lo|_hi)?\b', op): out |= {('s', 'exec')}
    return out

class I:
    __slots__ = ('text', 'mn', 'kind', 'dst', 'src', 'tag', 'A', 'B', 'C', 'passes', 'wide', 'data')
    def __init__(self, text, tag=None):
        self.text = text; self.tag = tag
        t = text.split(';')[0].strip()
        parts = t.split(None, 1)
        mn = parts[0]; self.mn = mn
        rest = parts[1] if len(parts) > 1 else ''
        ops = [o.strip() for o in rest.split(',')] if rest else []
        self.dst = set(); self.src = set(); self.A = self.B = self.C = set(); self.passes = 0
        self.wide = False; self.data = set()
        R = [regs_of(o) for o in ops]
        allr = set().union(*R) if R else set()
        if mn.startswith('v_mfma'):
            self.kind = 'mfma'
            self.dst = R[0]; self.A = R[1]; self.B = R[2]; self.C = R[3]
            self.src = R[1] | R[2] | R[3]
            self.passes = 8 if '32x32x16' in mn else 4
        elif mn.startswith('v_'):
            self.kind = 'valu'
            if mn.startswith('v_nop'):
                pass
            elif mn.startswith('v_permlane') and 'swap' in mn:
                self.dst = R[0] | R[1]; self.src = R[0] | R[1]
            elif mn.startswith('v_cmp'):
                self.dst = R[0]; self.src = set().union(*R[1:])
            elif mn.startswith(('v_add_co', 'v_sub_co', 'v_addc_co')):
                self.dst = R[0] | R[1]; self.src = set().union(*R[2:])
            else:
                self.dst = R[0]; self.src = set().union(*R[1:]) if len(R) > 1 else set()
                if mn.startswith(('v_fmac', 'v_dot2c', 'v_writelane')) or 'dpp' in mn or 'row_' in t or 'quad_perm' in t:
                    self.src |= R[0]
        elif mn.startswith('ds_'):
            self.kind = 'ds'
            if mn.startswith('ds_read') or mn.startswith('ds_bpermute') or mn.startswith('ds_swizzle'):
                self.dst = R[0]; self.src = set().union(*R[1:])
            else:
                self.src = allr
        elif mn.startswith(('buffer_', 'global_')):
            self.kind = 'vmem'
            islds = re.search(r'\blds\b', t) is not None
            if 'load' in mn:
                if islds:
                    self.src = allr | {('s', 'm0')}
                else:
                    self.dst = R[0]; self.src = set().union(*R[1:])
            elif 'atomic' in mn:
                self.src = allr
                if re.search(r'\bsc0\b', t): self.dst = R[0]
            else:
                self.src = allr
                if 'x4' in mn or 'x3' in mn:
                    self.wide = True
                    self.data = R[0] if mn.startswith('buffer_') else R[1]
        elif mn.startswith(('s_load', 's_memtime', 's_memrealtime')):
            self.kind = 'smem'; self.dst = R[0]; self.src = set().union(*R[1:]) if len(R) > 1 else set()
        elif mn in ('s_nop', 's_waitcnt', 's_barrier', 's_sleep', 's_setprio', 's_endpgm') or mn.startswith(('s_cbranch', 's_branch')):
            self.kind = 'ctl'
        elif mn.startswith('s_'):
            self.kind = 'salu'
            if mn.startswith(('s_cmp', 's_bitcmp')):
                self.src = allr
            else:
                self.dst = R[0] if R else set(); self.src = set().union(*R[1:]) if len(R) > 1 else set()
                if 'saveexec' in mn: self.dst |= {('s', 'exec')}
        else:
            raise ValueError('unknown instr ' + text)

class Op:
    def __init__(self, name, arg=None): self.name = name; self.arg = arg
def WAITVM(tag): return Op('waitvm', tag)
def WAITVM0(): return Op('waitvm0')
def WAITLG0(): return Op('waitlg0')
def WAITLG(tag): return Op('waitlg', tag)
def RAW(text): return Op('raw', text)
def SCOPE_BEGIN(): return Op('sb')
def SCOPE_END(): return Op('se')
def FLUSH(): return Op('flush')

def vreg(rs): return {r for r in rs if r[0] in 'va'}
def sreg(rs): return {r for r in rs if r[0] == 's'}

class Fin:
    def __init__(self):
        self.out = []
        self.vm = []
        self.lg = []
        self.smem = []
        self.hist = []
        self.clk = 0
        self.stack = []
        self.nops = 0
        self.waits = 0
    def _emit(self, text, states=1):
        self.out.append('    ' + text); self.clk += states
    def _wait(self, vm=None, lg=None):
        s = []
        if vm is not None:
            n = min(vm, 63); s.append(f'vmcnt({n})'); self.vm = self.vm[len(self.vm) - n:] if n else []
        if lg is not None:
            n = min(lg, 15)
            if self.smem: n = 0; self.smem = []
            s.append(f'lgkmcnt({n})'); self.lg = self.lg[len(self.lg) - n:] if n else []
        self._emit('s_waitcnt ' + ' '.join(s)); self.waits += 1
    def need(self, ins):
        req = 0
        rd = ins.src; wr = ins.dst
        isperm = ins.mn.startswith('v_permlane'); isdpp = ('dpp' in ins.mn or 'row_' in ins.text or 'quad_perm' in ins.text)
        isrl = ins.mn.startswith(('v_readlane', 'v_readfirstlane'))
        for (c, p) in self.hist:
            dist = self.clk - c - 1
            w = 0
            if p.kind == 'valu':
                pv = vreg(p.dst); ps = sreg(p.dst)
                if ins.kind == 'mfma' and pv & rd: w = max(w, 2)
                if (isperm or isdpp) and pv & rd: w = max(w, 2)
                if isrl and pv & rd: w = max(w, 1)
                if p.mn.startswith(TRANS) and pv & rd: w = max(w, 1)
                if p.mn.startswith('v_dot') and pv & (rd | wr):
                    same = ins.mn == p.mn
                    w = max(w, 0 if same else 3)
                if ps & rd:
                    if ins.kind in ('valu', 'mfma'): w = max(w, 4 if ins.mn.startswith(('v_readlane', 'v_writelane')) else 2)
                    if ins.kind == 'vmem': w = max(w, 5)
                    if ins.kind in ('salu', 'smem'): w = max(w, 1)
            elif p.kind == 'mfma':
                big = p.passes == 8
                if ins.kind == 'mfma':
                    if p.dst & (ins.A | ins.B): w = max(w, 12 if big else 8)
                    if p.dst & ins.C and not (p.dst == ins.C and p.mn == ins.mn): w = max(w, 10 if big else 6)
                    if p.dst & ins.dst and not (p.dst == ins.dst and p.mn == ins.mn): w = max(w, 10 if big else 6)
                elif ins.kind in ('valu', 'ds', 'vmem'):
                    if p.dst & (rd | wr): w = max(w, 12 if big else 8)
                    if p.C & wr: w = max(w, 7 if big else 3)
            elif p.kind == 'salu':
                if ('s', 'm0') in p.dst and ('s', 'm0') in rd and ins.kind in ('vmem', 'ds'): w = max(w, 1)
            elif p.kind == 'vmem' and p.wide:
                if p.data & wr: w = max(w, 2)
            if w - dist > req: req = w - dist
        return req
    def flush(self):
        req = 0
        for (c, p) in self.hist:
            dist = self.clk - c - 1
            w = {'valu': 5 if sreg(p.dst) else 3, 'mfma': 12 if p.passes == 8 else 8, 'salu': 1, 'vmem': 2}.get(p.kind, 0)
            req = max(req, w - dist)
        if req > 0:
            self._emit(f's_nop {req-1}', req); self.nops += req
    def add(self, x):
        if isinstance(x, str): x = I(x)
        if isinstance(x, Op):
            n = x.name
            if n == 'raw': self.out.append(x.arg)
            elif n == 'waitvm':
                idx = [i for i, o in enumerate(self.vm) if o.tag == x.arg]
                if idx: self._wait(vm=len(self.vm) - 1 - idx[-1])
            elif n == 'waitlg':
                idx = [i for i, o in enumerate(self.lg) if o.tag == x.arg]
                if idx: self._wait(lg=len(self.lg) - 1 - idx[-1])
            elif n == 'waitvm0':
                self._wait(vm=0)
            elif n == 'waitlg0':
                if self.lg or self.smem: self._wait(lg=0)
            elif n == 'flush': self.flush()
            elif n == 'sb':
                self.flush(); self.stack.append((list(self.vm), list(self.lg), list(self.smem)))
            elif n == 'se':
                saved = self.stack.pop()
                for o in self.vm + self.lg + self.smem:
                    if o.dst and not any(o is s for s in saved[0] + saved[1] + saved[2]):
                        raise ValueError('load left pending at scope end: ' + o.text)
                self.flush(); self.vm, self.lg, self.smem = saved
            return
        ins = x
        touch = ins.src | ins.dst
        nv = nl = None
        for i in range(len(self.vm) - 1, -1, -1):
            if self.vm[i].dst & touch:
                nv = len(self.vm) - 1 - i; break
        for i in range(len(self.lg) - 1, -1, -1):
            if self.lg[i].dst & touch:
                nl = len(self.lg) - 1 - i; break
        if any(o.dst & touch for o in self.smem): nl = 0
        if nv is not None or nl is not None: self._wait(nv, nl)
        req = self.need(ins)
        if req > 0:
            self._emit(f's_nop {req-1}', req); self.nops += req
        self.hist.append((self.clk, ins))
        states = 1
        if ins.mn == 's_nop': states = int(ins.text.split()[1]) + 1
        self._emit(ins.text, states)
        self.hist = [(c, p) for (c, p) in self.hist if self.clk - c <= 14]
        if ins.kind == 'vmem': self.vm.append(ins)
        elif ins.kind == 'ds': self.lg.append(ins)
        elif ins.kind == 'smem': self.smem.append(ins)
        if ins.mn == 's_waitcnt':
            m = re.search(r'vmcnt\((\d+)\)', ins.text)
            if m:
                n = int(m.group(1)); self.vm = self.vm[len(self.vm) - n:] if n and n < len(self.vm) else ([] if n == 0 else self.vm)
            m = re.search(r'lgkmcnt\((\d+)\)', ins.text)
            if m and int(m.group(1)) == 0: self.lg = []; self.smem = []
    def run(self, lst):
        for x in lst: self.add(x)
        return self

def weave(main, fill, per=None, start=0, cost=None):
    out = []; fi = 0
    n = len(main)
    def c(x):
        if isinstance(x, Op): return 1 if x.name.startswith('wait') else 0
        t = x.text if isinstance(x, I) else x
        return 2 if t.startswith(TRANS) else 1
    for i, m in enumerate(main):
        out.append(m)
        if i < start: continue
        budget = per[i] if isinstance(per, (list, tuple)) else per
        while fi < len(fill) and budget >= c(fill[fi]):
            budget -= c(fill[fi]); out.append(fill[fi]); fi += 1
    out.extend(fill[fi:])
    return out


def icost(x):
    if isinstance(x, Op): return 1 if x.name.startswith('wait') else 0
    t = x.text if isinstance(x, I) else x
    if t.startswith('v_mfma'): return 2
    return 2 if t.startswith(TRANS) else 1

def groups(lst):
    out = []; cur = []
    for x in lst:
        cur.append(x)
        if isinstance(x, I) and x.kind == 'vmem':
            out.append(cur); cur = []
    if cur:
        if out: out[-1].extend(cur)
        else: out.append(cur)
    return out

def weave2(main, per, dense=(), spread=(), s0=0, s1=None):
    n = len(main); s1 = n if s1 is None else s1
    gs = groups(list(spread))
    at = {}
    for k, g in enumerate(gs):
        pos = s0 + (k * (s1 - s0)) // len(gs)
        at.setdefault(pos, []).extend(g)
    dl = [(d[2] if len(d) > 2 else 10**9) for d in dense]
    dq = [(d[0], list(d[1]), min(dl[k:])) for k, d in enumerate(dense)]
    out = []; carry = []
    for i, m in enumerate(main):
        while dq and dq[0][2] <= i:
            out.extend(dq[0][1]); dq.pop(0)
        out.append(m)
        budget = per
        carry.extend(at.get(i, []))
        while carry and budget > 0:
            x = carry.pop(0); out.append(x); budget -= icost(x)
        while dq and dq[0][0] <= i:
            it = dq[0][1]
            while it and budget >= icost(it[0]):
                x = it.pop(0); out.append(x); budget -= icost(x)
            if it: break
            dq.pop(0)
    out.extend(carry)
    for d in dq: out.extend(d[1])
    return out
```

```python
from asmlib import *
from gen import *

O_LDS = 131072
ZW_LDS = 131072 - 4096
MP_LDS = 131072 - 5120

def w13_dma(nb, slot, groups_, tag):
    o = []
    for g in groups_:
        o.append(I(f"s_add_u32 m0, {sW4K}, {slot*32768 + g*16384}"))
        o.append(I(f"s_add_u32 {sD1}, {sD0}, {nb*32768 + g*16384}"))
        for n in range(4):
            o.append(I(f"buffer_load_dwordx4 {vL16}, {WS}, {sD1} offen offset:{n*1024} sc1 lds", tag))
    return o

def phase_t4(G):
    a = G.a
    a(SCOPE_BEGIN())
    a(f"s_cmp_lg_u32 {sW}, 0"); a("s_cbranch_scc1 L_arr")
    a(f"s_lshl_b32 {sT0}, {sXC}, 8"); a(f"s_add_u32 {sT0}, {sT0}, {WS_CNT1}")
    a("v_mov_b32 v40, 1")
    a(f"buffer_atomic_add v40, {vL0}, {WS}, {sT0} offen sc0 sc1")
    a("v_mov_b32 v41, 1")
    a("v_lshlrev_b32 v44, 8, v0")
    a(f"v_readfirstlane_b32 {sT0}, v40")
    a(f"s_cmp_lg_u32 {sT0}, 31"); a("s_cbranch_scc1 L_arr")
    a(f"s_mov_b32 {sT0}, {WS_REP}")
    a("s_mov_b32 exec_hi, 0")
    a(f"buffer_atomic_add v41, v44, {WS}, {sT0} offen sc1")
    a("s_mov_b32 exec_hi, -1")
    a(RAW("L_arr:"))
    a(SCOPE_END())
    G.stamp('arr', ('t4',))
    a(G.dma_wo(1))
    a("v_bfe_u32 v8, v0, 2, 2")
    a(f"v_xor_b32 v9, {sW}, v8")
    a("v_lshlrev_b32 v9, 6, v9")
    a("v_lshl_add_u32 v8, v8, 10, v9")
    a("v_lshrrev_b32 v10, 5, v0")
    a("v_lshl_add_u32 v8, v10, 8, v8")
    a("v_bfe_u32 v11, v0, 4, 1")
    a("v_lshl_add_u32 v8, v11, 5, v8")
    a("v_and_b32 v9, 3, v0")
    a("v_lshl_add_u32 v8, v9, 3, v8")
    a("v_add_u32 v9, 98304, v8")
    a(f"s_lshr_b32 {sT0}, {sXC}, 2"); a(f"s_lshr_b32 {sT1}, {sJ}, 2"); a(f"s_lshl3_add_u32 {sT0}, {sT0}, {sT1}")
    a(f"s_lshl2_add_u32 {sRB5}, {sT0}, {sW}")
    a(f"s_and_b32 {sT0}, {sXC}, 3"); a(f"s_lshl2_add_u32 {sM5}, {sT0}, {sC4}")
    a(f"s_lshr_b32 {sT0}, {sJ}, 3"); a(f"s_lshl2_add_u32 {sP6}, {sXC}, {sT0}")
    a(f"s_and_b32 {sN8}, {sJ}, 7")
    a("v_and_b32 v12, 3, v0"); a("v_lshlrev_b32 v12, 4, v12")
    a("v_bfe_u32 v13, v0, 2, 3"); a("v_lshl_add_u32 v12, v13, 7, v12"); a("v_lshl_add_u32 v12, v10, 6, v12")
    a("v_bfe_u32 v13, v0, 2, 1"); a(f"v_mul_u32_u24 v13, {WS_WBAR - WS_Z - 64}, v13"); a(f"v_add_u32 v13, {vL16}, v13")
    a(f"s_lshl_b32 {sT2}, {sW}, 10"); a(f"s_add_u32 {sT3}, {sT2}, {ZW_LDS}")
    a("v_lshlrev_b32 v14, 5, v10"); a("v_lshl_add_u32 v14, v11, 4, v14"); a(f"v_add_u32 v14, {sT3}, v14")
    a(f"v_lshl_add_u32 v15, v10, 4, {sT3}")
    a(f"s_lshl_b32 {sT0}, {sW}, 13")
    a(f"v_add_u32 v18, {sT0}, {vL16}"); a(f"v_add_u32 v18, {O_LDS}, v18")
    a(f"v_add_u32 v19, {O_LDS}, {vL16}")
    a(f"s_lshl_b32 {sT4}, {sR32}, 15"); a(f"s_add_u32 {sT4}, {sT4}, {sT0}")
    a(f"s_add_u32 {sT5}, {sT0}, {WS_KV}")
    a(f"s_add_u32 {sT6}, {sT2}, {WS_Z}")
    a(WAITVM("wo0")); a("s_barrier")
    for t in range(16):
        a(f"ds_read_b64_tr_b16 {ac(4*t,2)}, v8 offset:{t*4096}")
        a(f"ds_read_b64_tr_b16 {ac(4*t+2,2)}, v8 offset:{t*4096+512}")
    a(WAITVM("wo1")); a("s_barrier")
    for t in range(16):
        a(f"ds_read_b64_tr_b16 {ac(64+4*t,2)}, v9 offset:{t*4096}")
        a(f"ds_read_b64_tr_b16 {ac(64+4*t+2,2)}, v9 offset:{t*4096+512}")
    a(WAITLG0())
    G.stamp('wo', ('t4', 'all'))
    a(SCOPE_BEGIN())
    a(f"s_cmp_lg_u32 {sW}, 0"); a("s_cbranch_scc1 L_rel")
    a(f"s_and_b32 {sT0}, s2, 31"); a(f"s_lshl_b32 {sT0}, {sT0}, 8"); a(f"s_add_u32 {sT0}, {sT0}, {WS_REP}")
    G.spin('v40', vL0, WS, sT0, 1, 8)
    a(RAW("L_rel:"))
    a(SCOPE_END())
    a("s_barrier")
    G.stamp('sync1', ('t4', 'all'))
    KV, PQ, ZR, WR, FR, DD, OF, MA, BF = 48, 80, 112, 120, 128, 136, 168, 176, 192
    a(f"s_mov_b32 m0, {sT3}")
    a(f"s_add_u32 {sT0}, {sT5}, 4096"); a(f"s_add_u32 {sT1}, {sT4}, 4096")
    a(f"buffer_load_dwordx4 v13, {WS}, {sT6} offen sc1 lds", "zw")
    for i in range(8):
        a(f"buffer_load_dwordx4 {v(KV+4*i,4)}, v12, {WS}, {sT5 if i < 4 else sT0} offen offset:{(i&3)*1024} sc1")
        a(f"buffer_load_dwordx4 {v(PQ+4*i,4)}, {vL16}, {WS}, {sT4 if i < 4 else sT1} offen offset:{(i&3)*1024} sc1")
    a(f"s_mul_i32 {sD0}, {sM5}, {7*32768}"); a(f"s_add_u32 {sD0}, {sD0}, {sW4K}"); a(f"s_add_u32 {sD0}, {sD0}, {WS_W13P}")
    a(WAITVM("zw"))
    def zrd(i): return [f"ds_read_b128 {v(ZR+4*(i&1),4)}, v14 offset:{i*128}"]
    def wrd(i): return [f"ds_read_b128 {v(WR+4*(i&1),4)}, v15 offset:{i*128+64}"]
    def prep(i):
        f = FR + 4*(i&1); z = ZR + 4*(i&1); k = KV + 4*i
        return [f"v_cvt_pk_bf16_f32 v{f+2}, v{z}, v{z+1}", f"v_cvt_pk_bf16_f32 v{f+3}, v{z+2}, v{z+3}",
                f"v_cvt_pk_bf16_f32 v{f}, v{k}, v{k+1}", f"v_cvt_pk_bf16_f32 v{f+1}, v{k+2}, v{k+3}"]
    def swp(i):
        f = FR + 4*(i&1)
        return [f"v_permlane16_swap_b32 v{f}, v{f+2}", f"v_permlane16_swap_b32 v{f+1}, v{f+3}"]
    def mf(i): return [f"{M32} {v(DD+16*(i&1),16)}, {v(FR+4*(i&1),4)}, {v(PQ+4*i,4)}, 0"]
    def epi(i):
        d = DD + 16*(i&1); o = OF + 4*(i&1)
        r = [f"v_add_f32 v{d+8}, s54, v{d+8}", f"v_rcp_f32 v{d+8}, v{d+8}"]
        r2 = []
        for j in range(4):
            r2 += [f"v_mul_f32 v{d+2*j}, v{d+2*j}, v{d+8}", f"v_mul_f32 v{d+2*j+1}, v{d+2*j+1}, v{d+8}",
                   f"v_cvt_pk_bf16_f32 v{o+j}, v{d+2*j}, v{d+2*j+1}"]
        r3 = [f"ds_write_b128 v18, {v(o,4)} offset:{i*1024}",
              f"{M32} {v(MA,16)}, {v(WR+4*(i&1),4)}, {v(o,4)}, {'0' if i == 0 else v(MA,16)}"]
        return r, r2, r3
    a(zrd(0)); a(zrd(1)); a(wrd(0))
    a(prep(0)); a(swp(0)); a(mf(0))
    for i in range(8):
        r, r2, r3 = epi(i)
        if i < 7:
            a(prep(i+1))
            if i < 6: a(zrd(i+2))
            a(wrd(i+1))
            a(swp(i+1))
        a(r)
        if i < 7: a(mf(i+1))
        a(r2); a(r3)
    a(f"s_lshl_b32 {sT0}, {sW}, 8"); a(f"s_add_u32 {sT0}, {sT0}, {MP_LDS}")
    a(f"v_add_u32 v44, {sT0}, {vL4}")
    a(f"v_add_u32 v45, {MP_LDS}, {vL4}")
    a(f"ds_write_b32 v44, v{MA}")
    a(WAITLG0()); a("s_barrier")
    G.stamp('o', ('t4', 'all'))
    A4 = 24
    def brd(t): return I(f"ds_read_b128 {v(BF+4*(t%5),4)}, v19 offset:{t*1024}")
    main = IL([f"{M32} {v(A4,16)}, {ac(4*t,4)}, {v(BF+4*(t%5),4)}, {v(A4,16)}" for t in range(32)])
    for t in range(4): a(brd(t))
    dense = []
    for t in range(28):
        it = [brd(t+4)]
        if t == 0: it += IL([f"ds_read2st64_b32 v[48:49], v45 offset0:0 offset1:1", f"ds_read2st64_b32 v[50:51], v45 offset0:2 offset1:3"])
        if t == 8: it += IL(["v_add_f32 v48, v48, v49", "v_add_f32 v50, v50, v51", "v_add_f32 v48, v48, v50", "v_add_f32 v42, v42, v48"])
        if t == 10: it += IL([f"s_lshl2_add_u32 {sT0}, {sC4}, {sW}", f"s_lshl4_add_u32 {sT0}, {sR32}, {sT0}",
                              f"s_lshl_b32 {sT1}, {sT0}, 11", f"s_add_u32 {sT1}, {sT1}, {WS_HC}",
                              f"s_lshl_b32 {sT2}, {sT0}, 7", f"s_add_u32 {sT2}, {sT2}, {WS_SSQ}",
                              f"s_lshl_b32 {sT3}, {sT0}, 9", f"s_add_u32 {sT3}, {sT3}, {WS_FLG}"])
        if t == 13: it += IL([f"s_lshl_b32 {sT4}, {sR32}, 7", f"s_add_u32 {sT4}, {sT4}, {WS_MEAN}",
                              f"v_lshl_add_u32 v44, v10, 28, {vL4}",
                              f"s_and_b32 {sT5}, {sT0}, 15", f"s_lshl_b32 {sT5}, {sT5}, 26", f"v_add_u32 v45, {sT5}, v44"])
        dense.append((t, it, t+2))
    pre = w13_dma(0, 0, [0, 1], "w0") + w13_dma(1, 1, [0, 1], "w1") if G.o.get('w13early', 1) else []
    a(weave2(main, 5, dense, pre))
    G.stamp('wogemm', ('t4',))
    a(f"buffer_store_dword v42, v45, {WS}, {sT4} offen sc1")
    HF = 52
    for g in range(8):
        a(f"v_pk_add_f32 {v(A4+2*g,2)}, {v(A4+2*g,2)}, v[48:49] op_sel_hi:[1,0] neg_lo:[0,1] neg_hi:[0,1]")
        a(f"v_cvt_pk_bf16_f32 v{HF+g}, v{A4+2*g}, v{A4+2*g+1}")
        if g == 3: a(f"buffer_store_dwordx4 {v(HF,4)}, {vL16}, {WS}, {sT1} offen sc1")
    a(f"buffer_store_dwordx4 {v(HF+4,4)}, {vL16}, {WS}, {sT1} offen offset:1024 sc1")
    a(f"v_pk_mul_f32 v[50:51], {v(A4,2)}, {v(A4,2)}")
    for g in range(1, 8): a(f"v_pk_fma_f32 v[50:51], {v(A4+2*g,2)}, {v(A4+2*g,2)}, v[50:51]")
    a("v_add_f32 v50, v50, v51"); a("v_mov_b32 v51, v50")
    a("v_permlane32_swap_b32 v50, v51")
    a("v_add_f32 v50, v50, v51")
    a(f"buffer_store_dword v50, v44, {WS}, {sT2} offen sc1", "hc")
    a("v_mov_b32 v41, 1")
    a("s_barrier")
    a(WAITVM("hc"))
    a(f"buffer_store_dword v41, {vL0}, {WS}, {sT3} offen sc1")
    G.stamp('t4end', ('t4', 'all'))

H, ACC, WF = 128, 64, 44
def phase_t5(G):
    a = G.a
    rest = ([] if G.o.get('w13early', 1) else w13_dma(0, 0, [0, 1], "w0") + w13_dma(1, 1, [0, 1], "w1")) + w13_dma(2, 2, [0, 1], "w2")
    a(rest)
    a(f"v_lshlrev_b32 v12, 9, v0")
    a(f"s_lshl_b32 {sT0}, {sRB5}, 13"); a(f"s_add_u32 {sT0}, {sT0}, {WS_FLG}")
    a(f"s_lshl_b32 {sT1}, {sRB5}, 15"); a(f"s_add_u32 {sT1}, {sT1}, {WS_HC}")
    a(f"v_add_u32 v8, 0x10000, {vL16}"); a(f"v_add_u32 v9, 0x20000, {vL16}")
    a(f"s_lshl_b32 {sT2}, {sRB5}, 11"); a(f"s_add_u32 {sT2}, {sT2}, {WS_SSQ}")
    a("v_and_b32 v13, 31, v0"); a("v_lshlrev_b32 v13, 2, v13"); a("v_lshl_add_u32 v13, v10, 10, v13")
    a(f"s_mul_i32 {sT3}, {sRB5}, 112"); a(f"s_mul_i32 {sT4}, {sM5}, 7"); a(f"s_add_u32 {sT3}, {sT3}, {sT4}")
    a(f"s_lshl_b32 {sT3}, {sT3}, 10"); a(f"s_add_u32 {sT3}, {sT3}, {WS_HH}"); a(f"s_add_u32 {sT4}, {sT3}, 4096")
    a(f"s_lshl4_add_u32 {sT5}, {sRB5}, {sM5}"); a(f"s_lshl_b32 {sT5}, {sT5}, 9"); a(f"s_add_u32 {sT5}, {sT5}, {WS_FLG}")
    a(f"s_and_b32 {sT6}, {sW}, 1"); a(f"s_lshl1_add_u32 {sT6}, {sN8}, {sT6}")
    a(f"s_mul_i32 {sF0}, {sT6}, 114688"); a(f"s_xor_b32 {sT6}, {sT6}, 1"); a(f"s_mul_i32 {sF1}, {sT6}, 114688")
    a(f"s_mul_i32 {sT6}, {sW}, 28672"); a(f"s_add_u32 {sT6}, {sT6}, {WS_W2P}")
    a(f"s_add_u32 {sF0}, {sF0}, {sT6}"); a(f"s_add_u32 {sF1}, {sF1}, {sT6}")
    a(WAITVM("w2")); a("s_barrier")
    G.stamp('w13', ('t5',))
    a("s_mov_b64 exec, 0xffff")
    G.spin('v40', 'v12', WS, sT0, 0xffff, 1)
    a("s_mov_b64 exec, -1")
    G.stamp('sync2', ('t5', 'all'))
    def hld(k):
        o = []
        if k and k % 4 == 0: o.append(I(f"s_add_u32 {sT1}, {sT1}, 4096"))
        o.append(I(f"buffer_load_dwordx4 {v(H+4*k,4)}, {vL16}, {WS}, {sT1} offen offset:{(k&3)*1024} sc1"))
        return o
    def w2ld(f, i):
        s = sF0 if f == 0 else sF1; o = []
        if i and i % 4 == 0: o.append(I(f"s_add_u32 {s}, {s}, 4096"))
        o.append(I(f"buffer_load_dwordx4 {ac((f*28+i)*4,4)}, {vL16}, {WS}, {s} offen offset:{(i&3)*1024} sc1"))
        return o
    slot = lambda nb: nb % 5
    accof = lambda nb: ACC + 16 * (nb % 4)
    seq = [(nb, k) for k in range(32) for nb in range(3)] + [(nb, k) for nb in range(3, 7) for k in range(32)]
    def wrd(n):
        nb, k = seq[n]; off = slot(nb) * 32768 + k * 1024
        return I(f"ds_read_b128 {v(WF+4*(n%5),4)}, {[vL16,'v8','v9'][off >> 16]} offset:{off & 0xffff}")
    def mm(n):
        nb, k = seq[n]; c = v(accof(nb), 16)
        return I(f"{M32} {c}, {v(WF+4*(n%5),4)}, {v(H+4*k,4)}, {'0' if k == 0 else c}")
    T, HO = 24, 32
    def epi(nb):
        d = accof(nb); o = HO + 4*(nb & 1); r = []
        for j in range(0, 8, 2):
            r += [f"v_mul_f32 v{T}, v{d+j}, v20", f"v_mul_f32 v{T+1}, v{d+j+1}, v20",
                  f"v_exp_f32 v{T}, v{T}", f"v_exp_f32 v{T+1}, v{T+1}",
                  f"v_mul_f32 v{T+2}, v{d+j}, v{d+8+j}", f"v_mul_f32 v{T+3}, v{d+j+1}, v{d+9+j}",
                  f"v_fma_f32 v{T}, v{T}, v21, v21", f"v_fma_f32 v{T+1}, v{T+1}, v21, v21",
                  f"v_rcp_f32 v{T}, v{T}", f"v_rcp_f32 v{T+1}, v{T+1}",
                  f"v_mul_f32 v{T+2}, v{T+2}, v{T}", f"v_mul_f32 v{T+3}, v{T+3}, v{T+1}",
                  f"v_cvt_pk_bf16_f32 v{o+j//2}, v{T+2}, v{T+3}"]
        r.append(I(f"buffer_store_dwordx4 {v(o,4)}, {vL16}, {WS}, {sT3 if nb < 4 else sT4} offen offset:{(nb&3)*1024} sc1", f"hh{nb}"))
        return IL(r)
    ssq = IL([f"buffer_load_dword v{24+i}, v13, {WS}, {sT2} offen offset:{i*128} sc1" for i in range(8)])
    stat = IL(["v_add_f32 v24, v24, v25", "v_add_f32 v26, v26, v27", "v_add_f32 v28, v28, v29", "v_add_f32 v30, v30, v31",
               "v_add_f32 v24, v24, v26", "v_add_f32 v28, v28, v30", "v_add_f32 v24, v24, v28", "v_mov_b32 v25, v24", "s_nop 0", "s_nop 0",
               "v_permlane32_swap_b32 v24, v25", "v_add_f32 v24, v24, v25", "v_mov_b32 v25, 0x3727c5ac",
               "v_fmamk_f32 v21, v24, 0x3b000000, v25", "v_rsq_f32 v20, v21", "s_nop 0", "v_mul_f32 v20, 0xbfb8aa3b, v20"])
    def flag(st, tag): return [WAITVM(tag), I(f"buffer_store_dword v41, {vL0}, {WS}, {sT5} offen offset:{128*(st+1)} sc1")]
    LEAD = 4
    NPRE = G.o.get('hpre', 10)
    for k in range(NPRE): a(hld(k))
    for n in range(LEAD): a(wrd(n))
    w2all = [x for i in range(28) for f in range(2) for x in w2ld(f, i)]
    w2g = groups(w2all)
    def seg(n0, n1, extra, spread, s0=0, s1=None, stop_rd=None):
        main = [mm(n) for n in range(n0, n1)]
        dense = []
        ex = list(extra)
        per = -(-len(ex) // max(1, (n1 - n0 - 3)))
        for n in range(n0, n1):
            it = []
            if n + LEAD < (stop_rd if stop_rd is not None else 224): it.append(wrd(n + LEAD))
            dense.append((n - n0, it, n - n0 + 1))
        out = weave2(main, 6, [], spread, s0, s1)
        res = []; mi = 0; cost = 0
        i = 0
        while i < len(out):
            x = out[i]; res.append(x); i += 1
            if isinstance(x, I) and x.kind == 'mfma':
                res.extend(dense[mi][1]); used = len(dense[mi][1]) + 1
                while i < len(out) and not (isinstance(out[i], I) and out[i].kind == 'mfma'):
                    res.append(out[i]); used += icost(out[i]); i += 1
                if mi >= 3:
                    while ex and used + icost(ex[0]) <= 6:
                        used += icost(ex[0]); res.append(ex.pop(0))
                mi += 1
        res.extend(ex)
        return res
    spA = [x for k in range(NPRE, 32) for x in hld(k)]
    spB = w13_dma(3, 3, [0, 1], "w3") + ssq + w13_dma(4, 4, [0, 1], "w4")
    a(seg(0, 48, [], spA, 0, 44))
    a(seg(48, 96, [], spB, 0, 46, stop_rd=96))
    a(WAITVM("w4")); a(WAITLG0()); a("s_barrier")
    G.stamp('phA', ('t5', 'all'))
    for n in range(96, 96 + LEAD): a(wrd(n))
    a(stat)
    a(seg(96, 128, epi(0) + epi(1), w13_dma(5, 0, [0, 1], "w5") + w13_dma(6, 1, [0], "w6")))
    G.stamp('b3', ('t5',))
    a(seg(128, 160, epi(2) + epi(3), w13_dma(6, 1, [1], "w6") + [x for g in w2g[:8] for x in g], stop_rd=160))
    a(WAITVM("w6")); a("s_barrier")
    G.stamp('b4', ('t5',))
    for n in range(160, 160 + LEAD): a(wrd(n))
    a(seg(160, 192, epi(4), [x for g in w2g[8:22] for x in g]))
    a(flag(0, "hh3"))
    G.stamp('b5', ('t5',))
    a(seg(192, 224, epi(5), [x for g in w2g[22:36] for x in g]))
    G.stamp('b6', ('t5', 'all'))
    a(epi(6))
    a(flag(1, "hh5"))
    G.w2rest = [x for g in w2g[36:] for x in g]
    if G.stop <= 3:
        a(flag(2, "hh6"))
    G.flag3 = flag
    G.stamp('t5end', ('t5', 'all'))

def phase_t6(G):
    a = G.a
    OWN = 64
    accs = {(0, 0): v(OWN, 16), (1, 0): v(112, 16), (0, 1): ac(224, 16), (1, 1): ac(240, 16)}
    raw = {(1, 0): ('v', 112), (0, 1): ('a', 224), (1, 1): ('a', 240)}
    a(f"s_lshr_b32 {sT0}, {sW}, 1"); a(f"s_lshl1_add_u32 {sT0}, {sP6}, {sT0}")
    a(f"s_mul_i32 {sT1}, {sW}, 28672"); a(f"s_add_u32 {sT1}, {sT1}, {WS_HH}")
    a(f"s_mul_i32 {sD0}, {sT0}, 114688"); a(f"s_add_u32 {sD0}, {sD0}, {sT1}")
    a(f"s_xor_b32 {sT2}, {sT0}, 1"); a(f"s_mul_i32 {sD1}, {sT2}, 114688"); a(f"s_add_u32 {sD1}, {sD1}, {sT1}")
    a("v_and_b32 v12, 3, v0"); a("v_bfe_u32 v13, v0, 2, 1"); a("v_lshl_add_u32 v12, v13, 4, v12"); a("v_lshlrev_b32 v12, 9, v12")
    a(f"s_lshl3_add_u32 {sT2}, {sP6}, {sW}"); a(f"s_lshl_b32 {sT2}, {sT2}, 11"); a(f"s_add_u32 {sT2}, {sT2}, {WS_FLG + 128}")
    a(f"s_add_u32 {sT3}, {sT2}, 128"); a(f"s_add_u32 {sT4}, {sT2}, 256")
    G.spin('v40', 'v12', WS, sT2, 0xff, 1)
    G.stamp('sync3', ('t6', 'all'))
    order = [(mm, nb) for nb in range(4) for mm in range(4)] + [(mm, nb) for nb in (4, 5) for mm in range(4)] + [(mm, 6) for mm in range(4)]
    def hld(n):
        mm, nb = order[n]; i = mm*7 + nb; o = []
        for t in range(2):
            o.append(I(f"s_add_u32 {sD2}, {sD0 if t == 0 else sD1}, {i*1024}"))
            o.append(I(f"buffer_load_dwordx4 {v(H+8*(n%16)+4*t,4)}, {vL16}, {WS}, {sD2} offen sc1"))
        return o
    def mm_(n, f, t):
        mm, nb = order[n]; i = mm*7 + nb; c = accs[(f, t)]
        first = n == 0 and (f, t) != (0, 0)
        return I(f"{M32} {c}, {ac((f*28+i)*4,4)}, {v(H+8*(n%16)+4*t,4)}, {'0' if first else c}")
    a(f"s_and_b32 {sT6}, {sW}, 1"); a(f"s_lshl1_add_u32 {sT6}, {sN8}, {sT6}")
    a(f"s_lshl4_add_u32 {sT1}, {sT0}, {sT6}"); a(f"s_lshl_b32 {sT1}, {sT1}, 11"); a(f"s_add_u32 {sT1}, {sT1}, {WS_HC}")
    a(f"buffer_load_dwordx4 v[24:27], {vL16}, {WS}, {sT1} offen sc1")
    a(f"buffer_load_dwordx4 v[28:31], {vL16}, {WS}, {sT1} offen offset:1024 sc1")
    a(f"s_lshl_b32 {sT1}, {sT0}, 7"); a(f"s_add_u32 {sT1}, {sT1}, {WS_MEAN}")
    a("v_and_b32 v13, 31, v0"); a("v_lshlrev_b32 v14, 2, v13")
    a(f"buffer_load_dword v32, v14, {WS}, {sT1} offen sc1")
    a(G.w2rest)
    D = G.o.get('d6', 6)
    for n in range(D): a(hld(n))
    a(G.flag3(2, "hh6"))
    a(f"s_lshl_b32 {sT0}, {sT0}, 15"); a(f"s_lshl_b32 {sT6}, {sT6}, 6"); a(f"s_add_u32 {sT0}, {sT0}, {sT6}")
    a("v_lshlrev_b32 v13, 10, v13"); a("v_lshl_add_u32 v13, v10, 4, v13")
    for g in range(8):
        a(f"v_lshlrev_b32 v{OWN+2*g}, 16, v{24+g}")
        a(f"v_and_b32 v{OWN+2*g+1}, 0xffff0000, v{24+g}")
        a(f"v_pk_add_f32 {v(OWN+2*g,2)}, {v(OWN+2*g,2)}, v[32:33] op_sel_hi:[1,0]")
    for b in (1, 2, 3):
        a(f"s_xor_b32 {sT6}, {sW}, {b}"); a(f"s_mul_i32 {sT6}, {sT6}, 12288"); a(f"s_add_u32 {sT6}, {sT6}, {(b-1)*4096}")
        a(f"v_add_u32 v{1+b}, {sT6}, {vL16}")
    a(f"s_mul_i32 {sT6}, {sW}, 12288"); a(f"v_add_u32 v5, {sT6}, {vL16}")
    a("s_barrier")
    NK = 24
    for n in range(NK):
        nx = n + D
        if nx == 16: G.spin('v40', 'v12', WS, sT3, 0xff, 1)
        if nx == 24: G.spin('v40', 'v12', WS, sT4, 0xff, 1)
        main = [mm_(n, 0, 0), mm_(n, 1, 0), mm_(n, 1, 1), mm_(n, 0, 1)]
        a(weave2(main, 4, [], hld(nx) if nx < 28 else []))
    def dump(f, t):
        k, r = raw[(f, t)]; b = 2*t + f
        return IL([f"ds_write_b128 v{1+b}, {k}[{r+4*q}:{r+4*q+3}] offset:{q*1024}" for q in range(4)])
    blocks = [(1, 0), (0, 1), (1, 1), (0, 0)]
    for bi, (f, t) in enumerate(blocks):
        main = [mm_(n, f, t) for n in range(NK, 28)]
        a(main)
        if bi >= 1: a(dump(*blocks[bi-1]))
    a(WAITLG0()); a("s_barrier")
    G.stamp('t6gemm', ('t6', 'all'))
    for b in range(3):
        for q in range(4): a(f"ds_read_b128 {v(H+16*b+4*q,4)}, v5 offset:{b*4096+q*1024}")
    OUTF = 24
    for q in range(4):
        for h in range(2):
            r = 4*q + 2*h
            a(f"v_pk_add_f32 {v(OWN+r,2)}, {v(OWN+r,2)}, {v(H+r,2)}")
            a(f"v_pk_add_f32 {v(H+16+r,2)}, {v(H+16+r,2)}, {v(H+32+r,2)}")
            a(f"v_pk_add_f32 {v(OWN+r,2)}, {v(OWN+r,2)}, {v(H+16+r,2)}")
            a(f"v_cvt_pk_bf16_f32 v{OUTF+2*q+h}, v{OWN+r}, v{OWN+r+1}")
        if q & 1:
            b0 = OUTF + 2*(q-1)
            a(f"v_permlane32_swap_b32 v{b0}, v{b0+2}"); a(f"v_permlane32_swap_b32 v{b0+1}, v{b0+3}")
            a(f"buffer_store_dwordx4 {v(b0,4)}, v13, {srd(SOUT)}, {sT0} offen offset:{(q>>1)*32}")
```

```python
import sys
from asmlib import *

NAME = "sequential_preLN__linear_attn_block__glu_gated_swiglu__prompt"
WS_PQ   = 0x0000000
WS_HC   = 0x0200000
WS_HH   = 0x0400000
WS_W13P = 0x0B00000
WS_W2P  = 0x0E80000
WS_KV   = 0x1040000
WS_Z    = 0x1048000
WS_CNT1 = WS_Z + 4096
WS_REP  = WS_Z + 8192
WS_WBAR = 0x1050000
WS_MEAN = 0x1052000
WS_SSQ  = 0x1060000
WS_FLG  = 0x1080000
WS_TS   = 0x1100000
WS_END  = 0x1200000
OOB = 0x40000000
SPIN = 200000
SX, SWQ, SWO, SW1, SW3, SW2, SOUT, SWS, SDBG = 8, 12, 16, 20, 24, 28, 32, 36, 40
def srd(n): return f"s[{n}:{n+3}]"
WS = srd(SWS)
sW, sR64, sC4, sB, sC8, sS0, sJ, sXC = 's3', 's4', 's5', 's6', 's7', 's44', 's45', 's46'
sT0, sT1, sT2, sT3 = 's47', 's48', 's49', 's50'
sXO, sWOFF = 's51', 's52'
sPK = 's53'
sEPS, sL2E = 's[54:55]', 's[56:57]'
sM1, sM2, sMV = 's[58:59]', 's[60:61]', 's[62:63]'
sR32, sU, sW2K, sW4K = 's64', 's65', 's66', 's67'
sT4, sT5, sT6, sT7 = 's68', 's69', 's70', 's71'
sERR, sD0 = 's72', 's73'
sD1, sD2, sRB5, sM5 = 's0', 's1', 's58', 's59'
sP6, sN8, sF0, sF1 = 's60', 's61', 's62', 's63'
TS0 = 74
vL16, vL4, vL0 = 'v16', 'v17', 'v43'

def v(a, n=1): return f"v{a}" if n == 1 else f"v[{a}:{a+n-1}]"
def ac(a, n=1): return f"a{a}" if n == 1 else f"a[{a}:{a+n-1}]"
M16 = "v_mfma_f32_16x16x32_bf16"
M32 = "v_mfma_f32_32x32x16_bf16"
def IL(lst): return [I(x) if isinstance(x, str) else x for x in lst]

class G:
    def __init__(self, stop=99, ts=False, opts=None):
        self.L = []; self.stop = stop; self.ts = ts; self.nts = 0; self.tsn = []
        self.o = dict(pfd=2, tsset='all'); self.o.update(opts or {})
        self.nlab = 0
    def a(self, x, tag=None):
        if isinstance(x, list): self.L.extend(IL(x))
        elif isinstance(x, str): self.L.append(I(x, tag))
        else: self.L.append(x)
    def stamp(self, name, sets=('all',)):
        if self.ts and self.nts < 14 and (self.o['tsset'] in sets or name in ('start', 'end')):
            self.a(f"{'s_memtime' if self.o.get('clk') else 's_memrealtime'} s[{TS0+2*self.nts}:{TS0+2*self.nts+1}]")
            self.tsn.append(name); self.nts += 1
    def spin(self, vdst, vaddr, rsrc, soff, mask, target, pre=False, cmp='gt'):
        a = self.a; self.nlab += 1; n = self.nlab
        ld = f"buffer_load_dword {vdst}, {vaddr}, {rsrc}, {soff} offen sc1"
        if not pre: a(ld)
        a(f"v_cmp_gt_u32 vcc, {target}, {vdst}")
        a(f"s_and_b32 vcc_lo, vcc_lo, {hex(mask)}")
        a(SCOPE_BEGIN())
        a(f"s_cbranch_scc0 L_ok{n}")
        a(f"s_mov_b32 {sT7}, {SPIN}")
        a(RAW(f"L_spin{n}:"))
        a(ld)
        a(f"v_cmp_gt_u32 vcc, {target}, {vdst}")
        a(f"s_sub_u32 {sT7}, {sT7}, 1")
        a(f"s_cbranch_scc1 L_fail{n}")
        a(f"s_and_b32 vcc_lo, vcc_lo, {hex(mask)}")
        a(f"s_cbranch_scc1 L_spin{n}")
        a(f"s_branch L_ok{n}")
        a(RAW(f"L_fail{n}:"))
        a(f"s_add_u32 {sERR}, {sERR}, 1")
        a(RAW(f"L_ok{n}:"))
        a(SCOPE_END())

    def prologue(self):
        a = self.a
        self.stamp('start')
        a("s_cmp_ge_u32 s2, 256")
        a("s_cbranch_scc1 L_end")
        for n, off in [(SX, 0), (SWQ, 8), (SWS, 72), (SWO, 16), (SDBG, 64), (SW1, 32), (SW3, 40), (SW2, 48), (SOUT, 56)]:
            a(f"s_load_dwordx2 s[{n}:{n+1}], s[0:1], {off}")
        a("s_getpc_b64 s[48:49]")
        a(RAW("L_pc:"))
        a("s_lshr_b32 s45, s2, 3")
        a("s_lshl_b32 s47, s45, 11")
        a("v_lshl_add_u32 v14, v0, 3, s47")
        a("v_min_u32 v14, L_end-L_pc, v14")
        a("global_load_dword v15, v14, s[48:49]")
        a("v_lshrrev_b32 v1, 6, v0")
        a("v_and_b32 v0, 63, v0")
        a(f"v_readfirstlane_b32 {sW}, v1")
        for n, sz in [(SX, 2097152), (SWQ, 1572864)]:
            a(f"s_mov_b32 s{n+2}, {sz}")
            a(f"s_mov_b32 s{n+3}, 0x20000")
        a(f"s_and_b32 {sXC}, s2, 7")
        a(f"s_and_b32 {sB}, s2, 1")
        a(f"s_and_b32 {sC4}, {sJ}, 3")
        a(f"s_lshr_b32 {sT0}, {sJ}, 2")
        a(f"s_lshr_b32 {sT1}, {sXC}, 1")
        a(f"s_lshl3_add_u32 {sR64}, {sT1}, {sT0}")
        a(f"s_lshl2_add_u32 {sC8}, {sB}, {sC4}")
        a(f"s_lshl1_add_u32 {sS0}, {sC4}, {sT0}")
        a(f"s_add_u32 {sS0}, {sS0}, {sB}")
        a(f"s_and_b32 {sS0}, {sS0}, 7")
        a("v_lshrrev_b32 v18, 3, v0")
        a("v_lshrrev_b32 v19, 4, v0")
        a("v_and_b32 v1, 7, v0")
        a(f"s_lshl_b32 {sT0}, {sR64}, 6")
        a(f"s_lshl_b32 {sT1}, {sW}, 4")
        a(f"s_add_u32 {sT0}, {sT0}, {sT1}")
        a(f"v_add_u32 v2, {sT0}, v18")
        a("v_xor_b32 v3, v1, v19")
        a("v_lshlrev_b32 v3, 4, v3")
        a("v_lshl_add_u32 v2, v2, 10, v3")
        a("v_xor_b32 v3, 64, v2")
        a("v_add_u32 v3, 7168, v3")
        a(f"v_add_u32 v4, {sT1}, v18")
        a("v_mul_u32_u24 v4, 3072, v4")
        a("v_and_b32 v5, 1, v19")
        a("v_lshlrev_b32 v5, 1, v5")
        a("v_xor_b32 v5, v5, v1")
        a("v_lshl_add_u32 v6, v5, 4, v4")
        a(f"s_lshl_b32 {sT2}, {sC8}, 7")
        a(f"v_add_u32 v6, {sT2}, v6")
        a("v_xor_b32 v7, 64, v6")
        a("v_add_u32 v7, 22528, v7")
        a("v_add_u32 v4, 1024, v6")
        a("v_add_u32 v5, 1024, v7")
        a(f"s_lshl_b32 {sXO}, {sS0}, 7")
        a(f"s_mul_i32 {sWOFF}, {sS0}, 196608")
        a(f"s_lshl_b32 {sW2K}, {sW}, 11")
        a(f"s_lshl_b32 {sW4K}, {sW}, 12")

    def dma_stage(self, t):
        slot = t % 6; tg = f"st{t}"
        return [I(f"s_add_u32 m0, {sW2K}, {t*8192}"),
                I(f"buffer_load_dwordx4 v2, {srd(SX)}, {sXO} offen lds", tg),
                I(f"buffer_load_dwordx4 v3, {srd(SX)}, {sXO} offen offset:1024 lds", tg),
                I(f"s_add_u32 m0, {sW4K}, {65536 + slot*16384}"),
                I(f"buffer_load_dwordx4 v4, {srd(SWQ)}, {sWOFF} offen lds", tg),
                I(f"s_add_u32 {sXO}, {sXO}, 128"),
                I(f"buffer_load_dwordx4 v4, {srd(SWQ)}, {sWOFF} offen offset:1024 lds", tg),
                I(f"s_and_b32 {sXO}, {sXO}, 1023"),
                I(f"buffer_load_dwordx4 v5, {srd(SWQ)}, {sWOFF} offen offset:2048 lds", tg),
                I(f"buffer_load_dwordx4 v5, {srd(SWQ)}, {sWOFF} offen offset:3072 lds", tg),
                I(f"s_mul_i32 {sWOFF}, {sXO}, 1536")]
    def dma_q(self, t):
        tg = f"q{t}"
        return [I(f"s_add_u32 m0, {sW4K}, {65536 + (2 + t//2)*16384 + (t & 1)*1024}"),
                I(f"s_add_u32 {sXO}, {sXO}, 128"),
                I(f"buffer_load_dwordx4 v6, {srd(SWQ)}, {sWOFF} offen lds", tg),
                I(f"s_and_b32 {sXO}, {sXO}, 1023"),
                I(f"buffer_load_dwordx4 v7, {srd(SWQ)}, {sWOFF} offen offset:2048 lds", tg),
                I(f"s_mul_i32 {sWOFF}, {sXO}, 1536")]
    def dma_wo(self, half):
        o = [I(f"s_lshl_b32 {sD0}, {sW}, 16"), I(f"s_lshl_b32 {sD1}, {sW}, 14")]
        for g in range(4):
            o.append(I(f"s_add_u32 m0, {sD1}, {(98304 if half else 0) + g*4096}"))
            o.append(I(f"s_add_u32 {sD2}, {sD0}, {half*262144 + g*16384}"))
            for n in range(4):
                o.append(I(f"buffer_load_dwordx4 v{2+n}, {srd(SWO)}, {sD2} offen offset:{n*1024} lds", f"wo{half}"))
        return o

    def p1(self):
        a = self.a
        PFD = self.o['pfd']
        ONES = 20
        aK, aV, aQ, cK, cV, cQ, aS, aSS = 24, 44, 60, 76, 80, 84, 88, 92
        FS = [96, 112]
        STAT = 65536
        self.stamp('karg', ('p1',))
        a(self.dma_stage(0))
        for n, sz in [(SWO, 524288), (SW1, 1835008), (SW3, 1835008), (SW2, 1835008), (SOUT, 2097152), (SWS, WS_END), (SDBG, 256)]:
            a(f"s_mov_b32 s{n+2}, {sz}")
            a(f"s_mov_b32 s{n+3}, 0x20000")
        a(f"v_lshlrev_b32 {vL16}, 4, v0")
        a(f"v_lshlrev_b32 {vL4}, 2, v0")
        a(f"s_lshl2_add_u32 {sU}, s2, {sW}")
        a(f"s_lshl1_add_u32 {sR32}, {sR64}, {sB}")
        a(f"s_mov_b32 {sERR}, 0")
        for i in range(4): a(f"v_mov_b32 v{164+i}, 0")
        a(SCOPE_BEGIN())
        a("s_cmp_ge_u32 s2, 8")
        a("s_cbranch_scc1 L_nozero")
        a(f"s_lshl_b32 {sT0}, {sU}, 10")
        a(f"s_add_u32 {sT1}, {sT0}, {WS_Z}")
        a(f"s_add_u32 {sT0}, {sT0}, {WS_KV}")
        a(f"buffer_store_dwordx4 v[164:167], {vL16}, {WS}, {sT0} offen sc1")
        a(f"buffer_store_dwordx4 v[164:167], {vL16}, {WS}, {sT1} offen sc1")
        a(RAW("L_nozero:"))
        a(SCOPE_END())
        for i in range(4): a(f"v_mov_b32 v{ONES+i}, 0x3f803f80")
        a("v_and_b32 v14, 15, v0")
        a("v_lshrrev_b32 v10, 1, v14")
        a("v_xor_b32 v10, v10, v19")
        a("v_lshlrev_b32 v10, 4, v10")
        a("v_lshl_add_u32 v10, v14, 7, v10")
        a("v_xor_b32 v11, 64, v10")
        a(f"v_add_u32 v12, {sW2K}, v10")
        a(f"v_add_u32 v13, {sW2K}, v11")
        a("v_bfe_u32 v8, v0, 3, 2")
        a(f"v_xor_b32 v8, {sW}, v8")
        a("v_lshlrev_b32 v8, 5, v8")
        a("v_lshl_add_u32 v8, v19, 11, v8")
        a("v_bfe_u32 v9, v0, 2, 2")
        a("v_lshl_add_u32 v8, v9, 7, v8")
        a("v_and_b32 v9, 3, v0")
        a("v_lshl_add_u32 v8, v9, 3, v8")
        a("v_add_u32 v8, 0x10000, v8")
        a("v_add_u32 v9, 0x10000, v8")
        a("s_mov_b32 s54, 0x358637bd"); a("s_mov_b32 s55, 0x358637bd")
        a("s_mov_b32 s56, 0x3fb8aa3b"); a("s_mov_b32 s57, 0x3fb8aa3b")
        a("s_mov_b32 s58, 0xaaaaaaaa"); a("s_mov_b32 s59, 0xaaaaaaaa")
        a("s_mov_b32 s60, 0xcccccccc"); a("s_mov_b32 s61, 0xcccccccc")
        a("s_mov_b32 s62, 0x00f0000f"); a("s_mov_b32 s63, 0xf0000f00")
        a("v_cmp_eq_u32 vcc, 0, v0")
        a(f"v_mov_b32 {vL0}, {OOB}")
        a(f"v_cndmask_b32 {vL0}, {vL0}, v164, vcc")
        for t in range(1, PFD): a(self.dma_stage(t))

        XA = lambda t, ks, bi: (2*t + ks) * 16 + 4 * bi
        def reads(t, ks):
            f = FS[ks]; slot = t % 6
            base = 'v8' if slot < 4 else 'v9'; so = (slot % 4) * 16384 + ks * 8192
            xa = 'v10' if ks == 0 else 'v11'; xs = 'v12' if ks == 0 else 'v13'
            r = [f"ds_read_b64_tr_b16 {v(f+4,2)}, {base} offset:{so}",
                 f"ds_read_b64_tr_b16 {v(f+6,2)}, {base} offset:{so+512}",
                 f"ds_read_b128 {ac(XA(t,ks,0),4)}, {xa} offset:{t*8192}",
                 f"ds_read_b64_tr_b16 {v(f+8,2)}, {base} offset:{so+1024}",
                 f"ds_read_b64_tr_b16 {v(f+10,2)}, {base} offset:{so+1536}"]
            for bi in range(1, 4): r.append(f"ds_read_b128 {ac(XA(t,ks,bi),4)}, {xa} offset:{t*8192+bi*2048}")
            r.append(f"ds_read_b128 {v(f,4)}, {xs} offset:{t*8192}")
            return IL(r)
        def mfmas(t, ks):
            f = FS[ks]; first = (t == 0 and ks == 0)
            c = lambda r: '0' if first else v(r, 4)
            m = [f"{M16} {v(cK,4)}, {v(ONES,4)}, {v(f+4,4)}, {c(cK)}",
                 f"{M16} {v(aK,4)}, {ac(XA(t,ks,0),4)}, {v(f+4,4)}, {c(aK)}",
                 f"{M16} {v(cV,4)}, {v(ONES,4)}, {v(f+8,4)}, {c(cV)}",
                 f"{M16} {v(aV,4)}, {ac(XA(t,ks,0),4)}, {v(f+8,4)}, {c(aV)}"]
            for bi in range(1, 4):
                m.append(f"{M16} {v(aK+4*bi,4)}, {ac(XA(t,ks,bi),4)}, {v(f+4,4)}, {c(aK+4*bi)}")
                m.append(f"{M16} {v(aV+4*bi,4)}, {ac(XA(t,ks,bi),4)}, {v(f+8,4)}, {c(aV+4*bi)}")
            m.append(f"{M16} {v(aS,4)}, {v(ONES,4)}, {v(f,4)}, {c(aS)}")
            m.append(f"{M16} {v(aSS,4)}, {v(f,4)}, {v(f,4)}, {c(aSS)}")
            return IL(m)
        sched = {t: [] for t in range(9)}
        for i in range(PFD, 8): sched[i - PFD] += self.dma_stage(i)
        for i in range(8): sched[min(8, max(8 - PFD + i // 3, 3 + i // 2))] += self.dma_q(i)
        RX = 128
        resid = IL([
            "v_and_b32 v160, 31, v0", f"s_lshl_b32 {sT0}, {sB}, 5", f"v_add_u32 v160, {sT0}, v160",
            f"s_lshr_b32 {sT1}, {sW}, 1", f"s_lshl1_add_u32 {sT0}, {sC4}, {sT1}", f"s_sub_u32 {sT0}, {sT0}, {sS0}",
            f"s_and_b32 {sT0}, {sT0}, 7", f"s_lshl_b32 {sT0}, {sT0}, 13", f"s_and_b32 {sT1}, {sW}, 1", f"s_lshl_b32 {sT1}, {sT1}, 2",
            "v_bfe_u32 v161, v160, 1, 3", f"v_xor_b32 v161, {sT1}, v161", "v_lshlrev_b32 v161, 4, v161",
            "v_lshl_add_u32 v161, v160, 7, v161", "v_lshrrev_b32 v162, 5, v0", "v_lshl_add_u32 v161, v162, 3, v161",
            f"v_add_u32 v161, {sT0}, v161", "v_xor_b32 v162, 16, v161", "v_xor_b32 v163, 32, v161", "v_xor_b32 v168, 48, v161",
            "v_lshlrev_b32 v160, 2, v160", f"v_add_u32 v160, {STAT+256}, v160"])
        residrd = IL([f"ds_read_b64 {v(RX+2*g,2)}, {['v161','v162','v163','v168'][g]}" for g in range(4)])
        for t in range(8):
            a(WAITVM(f"st{t}"))
            a(WAITLG0())
            a("s_barrier")
            if t in (0, 1, 2, 4, 6, 7): self.stamp(f'st{t}', ('p1',) if t else ('p1', 'all'))
            if t == 1:
                a(SCOPE_BEGIN())
                a(f"s_cmp_ge_u32 {sU}, 32"); a("s_cbranch_scc1 L_noz")
                a(f"s_cmp_lg_u32 {sW}, 0"); a("s_cbranch_scc1 L_noz")
                a(f"buffer_store_dword v{ONES}, {vL0}, {srd(SDBG)}, {sU} offen sc1")
                a(RAW("L_noz:"))
                a(SCOPE_END())
            sp = list(sched[t])
            if t == 7: sp.append(I(f"buffer_load_dword v171, {vL4}, {srd(SDBG)}, 0 offen sc1"))
            if t == 0:
                a(reads(0, 0))
                a(weave2(mfmas(0, 0), 2, [(0, reads(0, 1))], sp))
            else:
                extra = resid[:11] if t == 5 else resid[11:] if t == 6 else []
                a(weave2(mfmas(t-1, 1) + mfmas(t, 0), 2, [(0, reads(t, 0), 10), (12, reads(t, 1) + extra)], sp))
        a(weave2(mfmas(7, 1), 2, [(0, residrd)], sched[8]))
        self.stamp('kvgemm', ('p1', 'all'))
        a(f"s_lshl_b32 {sT0}, {sW}, 6")
        a(f"s_add_u32 {sT0}, {sT0}, {STAT}")
        a(f"v_lshl_add_u32 v163, v14, 2, {sT0}")
        a(f"v_mul_f32 v162, 0x3b000000, v{aS}")
        a(f"v_cndmask_b32 v161, v{aSS}, v{aSS+1}, {sM1}")
        a(f"v_cndmask_b32 v168, v{aSS+2}, v{aSS+3}, {sM1}")
        a("v_mul_f32 v169, v162, v162")
        a(f"v_cndmask_b32 v161, v161, v168, {sM2}")
        a("v_subrev_f32 v169, 0x3727c5ac, v169")
        a("v_mul_f32 v161, 0x3b000000, v161")
        a("v_sub_f32 v161, v161, v169")
        a("v_max_f32 v161, 0x3727c5ac, v161")
        a("v_rsq_f32 v161, v161")
        a(f"s_mov_b64 exec, {sMV}")
        a("ds_write2_b32 v163, v161, v162 offset0:0 offset1:64")
        a("s_mov_b64 exec, -1")
        a(f"v_lshlrev_b32 v163, 4, v19")
        a(f"v_add_u32 v163, {STAT}, v163")
        a(WAITLG0())
        a("s_barrier")
        R, Mn = 176, 192
        for bi in range(4):
            a(f"ds_read_b128 {v(Mn+4*bi,4)}, v163 offset:{256+bi*64}")
            a(f"ds_read_b128 {v(R+4*bi,4)}, v163 offset:{bi*64}")
        a("ds_read_b32 v42, v160")
        WB = 236
        raw = IL([
            "s_cmp_lt_u32 s2, 224", f"s_cselect_b32 {sT4}, 0, {OOB}", f"s_cselect_b32 {sT5}, {OOB}, 0",
            f"s_and_b32 {sT0}, {sU}, 31", f"s_mul_i32 {sT0}, {sT0}, {16*3584}", f"s_lshr_b32 {sT1}, {sU}, 5",
            f"s_lshl_b32 {sT1}, {sT1}, 7", f"s_add_u32 {sT0}, {sT0}, {sT1}",
            "v_mul_u32_u24 v172, 3584, v18", f"v_lshl_add_u32 v174, v1, 4, {sT4}", "v_add_u32 v172, v174, v172",
            f"s_mul_i32 {sPK}, {sW}, 6144", f"s_add_u32 {sPK}, {sPK}, {STAT+1024}", f"s_add_u32 {sT1}, {sT0}, {8*3584-1024}",
            f"s_mov_b32 m0, {sPK}", "v_lshl_add_u32 v173, v18, 10, v174",
            I(f"buffer_load_dwordx4 v172, {srd(SW1)}, {sT0} offen lds", "pk"),
            I(f"buffer_load_dwordx4 v172, {srd(SW1)}, {sT1} offen offset:1024 lds", "pk"),
            f"s_add_u32 m0, {sPK}, 2048",
            I(f"buffer_load_dwordx4 v172, {srd(SW3)}, {sT0} offen lds", "pk"),
            I(f"buffer_load_dwordx4 v172, {srd(SW3)}, {sT1} offen offset:1024 lds", "pk"),
            f"s_lshr_b32 {sT0}, {sU}, 3", f"s_lshl_b32 {sT0}, {sT0}, 14", f"s_and_b32 {sT1}, {sU}, 7", f"s_lshl_b32 {sT1}, {sT1}, 7",
            f"s_add_u32 {sT0}, {sT0}, {sT1}", f"s_add_u32 m0, {sPK}, 4096", f"s_add_u32 {sT1}, {sT0}, {8192-1024}",
            I(f"buffer_load_dwordx4 v173, {srd(SW2)}, {sT0} offen lds", "pk"),
            I(f"buffer_load_dwordx4 v173, {srd(SW2)}, {sT1} offen offset:1024 lds", "pk"),
            f"s_and_b32 {sT0}, s2, 31", f"s_lshl4_add_u32 {sT0}, {sT0}, {sW}", f"s_lshl_b32 {sT0}, {sT0}, 10",
            "v_bfe_u32 v172, v0, 2, 2", f"v_lshl_add_u32 v172, v172, 12, {sT5}",
            "v_and_b32 v173, 3, v0", "v_lshl_add_u32 v172, v173, 4, v172", "v_lshl_add_u32 v172, v19, 6, v172"] +
            [f"buffer_load_dwordx4 {v(WB+4*n,4)}, v172, {srd(SWO)}, {sT0} offen offset:{n*256}" for n in range(4)])
        PKf, VVf = 96, 104
        T = 208
        ep = []
        for bi in range(4):
            for h in range(2):
                r = 4*bi + 2*h
                ep += [f"v_pk_fma_f32 {v(aK+r,2)}, {v(Mn+r,2)}, {v(cK,2)}, {v(aK+r,2)} neg_lo:[1,0,0] neg_hi:[1,0,0]",
                       f"v_pk_fma_f32 {v(aV+r,2)}, {v(Mn+r,2)}, {v(cV,2)}, {v(aV+r,2)} neg_lo:[1,0,0] neg_hi:[1,0,0]",
                       f"v_pk_fma_f32 {v(aK+r,2)}, {v(aK+r,2)}, {v(R+r,2)}, {sEPS}",
                       f"v_pk_mul_f32 {v(aV+r,2)}, {v(aV+r,2)}, {v(R+r,2)}",
                       f"v_pk_mul_f32 {v(T,2)}, {v(aK+r,2)}, {sL2E}",
                       f"v_max_f32 v{aK+r}, s54, v{aK+r}",
                       f"v_exp_f32 v{T}, v{T} clamp",
                       f"v_exp_f32 v{T+1}, v{T+1} clamp",
                       f"v_max_f32 v{aK+r+1}, s54, v{aK+r+1}",
                       f"v_cvt_pk_bf16_f32 v{VVf+2*bi+h}, v{aV+r}, v{aV+r+1}",
                       f"v_pk_add_f32 {v(aK+r,2)}, {v(aK+r,2)}, {v(T,2)}",
                       f"v_cvt_pk_bf16_f32 v{PKf+2*bi+h}, v{aK+r}, v{aK+r+1}"]
        gs = groups(raw)
        a(gs[0])
        a(weave2(IL(ep), 20, [], [x for g in gs[1:6] for x in g], 10))
        KVD, ZD = 24, 28
        a(f"{M16} {v(KVD,4)}, {v(VVf,4)}, {v(PKf,4)}, 0")
        a(f"{M16} {v(ZD,4)}, {v(ONES,4)}, {v(PKf,4)}, 0")
        a(f"{M16} {v(KVD,4)}, {v(VVf+4,4)}, {v(PKf+4,4)}, {v(KVD,4)}")
        a(f"{M16} {v(ZD,4)}, {v(ONES,4)}, {v(PKf+4,4)}, {v(ZD,4)}")
        a("v_bfe_u32 v161, v0, 2, 1")
        a("v_lshlrev_b32 v161, 9, v161")
        a("v_bfe_u32 v162, v0, 3, 1")
        a("v_lshl_add_u32 v161, v162, 6, v161")
        a("v_and_b32 v162, 3, v0")
        a("v_lshl_add_u32 v161, v162, 2, v161")
        a("v_lshl_add_u32 v161, v19, 4, v161")
        a(f"v_lshl_add_u32 v162, v19, 28, {vL4}")
        a(f"s_lshl2_add_u32 {sT6}, {sC8}, {sW}")
        a(f"s_lshl_b32 {sT2}, {sT6}, 10")
        a(f"s_add_u32 {sT2}, {sT2}, {WS_KV}")
        a(f"s_lshl_b32 {sT3}, {sT6}, 7")
        a(f"s_add_u32 {sT3}, {sT3}, {WS_Z}")
        self.spin('v171', vL4, srd(SDBG), '0', 0xff, 1, pre=True)
        for i in range(4):
            a(f"buffer_atomic_add_f32 v{KVD+i}, v161, {WS}, {sT2} offen offset:{i*128}")
        a(f"buffer_atomic_add_f32 v{ZD}, v162, {WS}, {sT3} offen")
        self.stamp('atom', ('p1', 'all'))
        a(WAITVM("q7"))
        a("s_barrier")
        QW = [112, 116, 120]
        def qreads(n):
            t, ks = n // 2, n % 2
            f = QW[n % 3]; slot = 2 + t // 2
            base = 'v8' if slot < 4 else 'v9'; so = (slot % 4) * 16384 + ks * 8192 + (t & 1) * 1024
            return IL([f"ds_read_b64_tr_b16 {v(f,2)}, {base} offset:{so}", f"ds_read_b64_tr_b16 {v(f+2,2)}, {base} offset:{so+512}"])
        def qmf(n):
            f = QW[n % 3]; c = lambda r: '0' if n == 0 else v(r, 4)
            m = [f"{M16} {v(cQ,4)}, {v(f,4)}, {v(ONES,4)}, {c(cQ)}"]
            for bi in range(4): m.append(f"{M16} {v(aQ+4*bi,4)}, {v(f,4)}, {ac(16*n+4*bi,4)}, {c(aQ+4*bi)}")
            return IL(m)
        PB = 212
        woprep = IL(["v_lshlrev_b32 v2, 10, v19", f"s_lshl_b32 {sD0}, {sC4}, 8", f"v_lshl_add_u32 v2, v14, 4, v2", f"v_add_u32 v2, {sD0}, v2"] +
                    [x for n in (1, 2, 3) for x in (f"v_xor_b32 v{2+n}, {n*64}, v2", f"v_add_u32 v{2+n}, {n*3072}, v{2+n}")])
        flagz = IL([f"s_lshl_b32 {sD2}, {sU}, 9", f"s_add_u32 {sD2}, {sD2}, {WS_FLG}", "v_lshlrev_b32 v175, 3, v0",
                    f"buffer_store_dwordx2 v[164:165], v175, {WS}, {sD2} offen sc1"])
        pkprep = IL([
            "v_bfe_u32 v172, v0, 2, 2", "v_bfe_u32 v173, v0, 5, 1", "v_lshl_add_u32 v172, v173, 2, v172", "v_lshlrev_b32 v172, 7, v172",
            "v_and_b32 v173, 3, v0", "v_lshl_add_u32 v172, v173, 3, v172", f"v_add_u32 v172, {sPK}, v172",
            "v_bfe_u32 v174, v0, 4, 1", "v_lshl_add_u32 v173, v174, 5, v172", "v_lshl_add_u32 v172, v174, 11, v172",
            f"v_add_u32 v174, {sT4}, {vL16}",
            f"s_lshr_b32 {sT0}, {sU}, 5", f"s_lshl_b32 {sT0}, {sT0}, 17", f"s_and_b32 {sT1}, {sU}, 31", f"s_lshl_b32 {sT1}, {sT1}, 10",
            f"s_add_u32 {sT0}, {sT0}, {sT1}", f"s_add_u32 {sT0}, {sT0}, {WS_W13P}",
            f"s_and_b32 {sT2}, {sU}, 7", f"s_mul_i32 {sT2}, {sT2}, {2*114688}", f"s_lshr_b32 {sT1}, {sU}, 3", f"s_lshl_b32 {sT1}, {sT1}, 10",
            f"s_add_u32 {sT2}, {sT2}, {sT1}", f"s_add_u32 {sT2}, {sT2}, {WS_W2P}"])
        pkrd = [WAITVM("pk")]
        for g in range(4):
            pkrd += IL([f"ds_read_b64_tr_b16 {v(PB+4*g,2)}, v172 offset:{g*32}", f"ds_read_b64_tr_b16 {v(PB+4*g+2,2)}, v172 offset:{g*32+1024}"])
        for f in range(2):
            pkrd += IL([f"ds_read_b64_tr_b16 {v(PB+16+4*f,2)}, v173 offset:{4096+f*64}", f"ds_read_b64_tr_b16 {v(PB+16+4*f+2,2)}, v173 offset:{4096+f*64+1024}"])
        pkst = []
        for g in range(4):
            if g: pkst.append(I(f"s_add_u32 {sT0}, {sT0}, 32768"))
            pkst.append(I(f"buffer_store_dwordx4 {v(PB+4*g,4)}, v174, {WS}, {sT0} offen sc1"))
        pkst += IL([f"buffer_store_dwordx4 {v(PB+16,4)}, v174, {WS}, {sT2} offen sc1", f"s_add_u32 {sT2}, {sT2}, 114688",
                    f"buffer_store_dwordx4 {v(PB+20,4)}, v174, {WS}, {sT2} offen sc1"])
        main = []; dense = []
        for n in range(16):
            if n + 2 < 16: dense.append((5*n, qreads(n+2), 5*n+7))
            if n == 1: dense.append((5*n, pkprep[:8]))
            if n == 2: dense.append((5*n, pkprep[8:16]))
            if n == 3: dense.append((5*n, pkprep[16:]))
            if n == 9: dense.append((5*n, pkrd[:7]))
            if n == 10: dense.append((5*n, pkrd[7:]))
            main += qmf(n)
        a(qreads(0)); a(qreads(1))
        wo0 = self.dma_wo(0)
        wbld = [x for g in gs[6:] for x in g]
        a(wbld[:8])
        a(wbld[8:])
        sp1 = woprep + flagz + wo0
        g1 = groups(sp1)
        part1 = weave2(main[:56], 2, [d for d in dense if d[0] < 56], [x for g in g1[:13] for x in g], 2)
        part2 = weave2(main[56:], 2, [(d[0]-56, d[1], d[2]-56) for d in dense if d[0] >= 56], pkst, 0)
        a(part1); a(part2)
        self.stamp('qgemm', ('p1', 'all'))
        WD = 32
        for n in range(4):
            a(f"{M16} {v(WD,4)}, {v(WB+4*n,4)}, {v(ONES,4)}, {'0' if n == 0 else v(WD,4)}")
        a(f"v_lshlrev_b32 v163, 2, v14")
        a(f"v_add_u32 v163, {STAT}, v163")
        for bi in range(4):
            a(f"ds_read2_b32 {v(R+2*bi,2)}, v163 offset0:{16*bi} offset1:{64+16*bi}")
        a(f"s_lshl_b32 {sT0}, {sR64}, 16")
        a(f"s_lshl_b32 {sT1}, {sT6}, 10")
        a(f"s_add_u32 {sT0}, {sT0}, {sT1}")
        a(f"s_add_u32 {sT1}, {sT0}, 32768")
        a(f"s_and_b32 {sT2}, s2, 31"); a(f"s_lshl_b32 {sT2}, {sT2}, 7")
        a(f"s_and_b32 {sT3}, {sW}, 1"); a(f"s_lshl4_add_u32 {sT2}, {sT3}, {sT2}")
        a(f"s_lshr_b32 {sT3}, {sW}, 1"); a(f"s_lshl3_add_u32 {sT2}, {sT3}, {sT2}")
        a(f"s_add_u32 {sT2}, {sT2}, {WS_WBAR}")
        a(f"v_lshl_add_u32 v172, v19, 1, {sT5}")
        a(f"v_lshl_add_u32 v172, v14, 26, v172")
        a(f"v_pk_add_f32 {v(WD,2)}, {v(WD,2)}, {v(WD+2,2)}")
        a(f"v_add_f32 v{WD}, v{WD}, v{WD+1}")
        a(f"v_mul_f32 v{WD}, 0x3b000000, v{WD}")
        a(f"v_cvt_pk_bf16_f32 v{WD}, v{WD}, v{WD}")
        a(f"buffer_store_short v{WD}, v172, {WS}, {sT2} offen sc1")
        QF = 96
        ep = []
        for bi in range(4):
            for h in range(2):
                r = 4*bi + 2*h
                ep += [f"v_pk_fma_f32 {v(aQ+r,2)}, {v(cQ+2*h,2)}, {v(R+2*bi,2)}, {v(aQ+r,2)} op_sel:[0,1,0] op_sel_hi:[1,1,1] neg_lo:[1,0,0] neg_hi:[1,0,0]",
                       f"v_pk_fma_f32 {v(aQ+r,2)}, {v(aQ+r,2)}, {v(R+2*bi,2)}, {sEPS} op_sel_hi:[1,0,1]",
                       f"v_pk_mul_f32 {v(T,2)}, {v(aQ+r,2)}, {sL2E}",
                       f"v_max_f32 v{aQ+r}, s54, v{aQ+r}",
                       f"v_exp_f32 v{T}, v{T} clamp",
                       f"v_exp_f32 v{T+1}, v{T+1} clamp",
                       f"v_max_f32 v{aQ+r+1}, s54, v{aQ+r+1}",
                       f"v_pk_add_f32 {v(aQ+r,2)}, {v(aQ+r,2)}, {v(T,2)}",
                       f"v_cvt_pk_bf16_f32 v{QF+2*bi+h}, v{aQ+r}, v{aQ+r+1}"]
            if bi & 1:
                b0 = QF + 2*(bi-1)
                ep += [f"v_permlane16_swap_b32 v{b0}, v{b0+2}", f"v_permlane16_swap_b32 v{b0+1}, v{b0+3}",
                       I(f"buffer_store_dwordx4 {v(b0,4)}, {vL16}, {WS}, {sT0 if bi == 1 else sT1} offen sc1", "pq")]
        a(ep)
        a([x for g in g1[13:] for x in g])
        A4 = 24
        for g in range(4):
            for d in range(2):
                a(f"v_lshlrev_b32 v{A4+4*g+2*d}, 16, v{RX+2*g+d}")
                a(f"v_and_b32 v{A4+4*g+2*d+1}, 0xffff0000, v{RX+2*g+d}")
                a(f"v_pk_add_f32 {v(A4+4*g+2*d,2)}, {v(A4+4*g+2*d,2)}, v[42:43] op_sel_hi:[1,0] neg_lo:[0,1] neg_hi:[0,1]")
        a(WAITVM("pq"))
        a(WAITLG0())
        a("s_barrier")
        self.stamp('p1end', ('p1', 'all'))

    def finish(self):
        a = self.a
        self.stamp('end')
        if self.ts:
            a(WAITLG0())
            for i in range(self.nts):
                a(f"v_writelane_b32 v4, s{TS0+2*i}, {i}")
            a(f"v_writelane_b32 v4, {sERR}, 15")
            a(f"s_lshl_b32 {sT0}, {sU}, 6")
            a(f"s_add_u32 {sT0}, {sT0}, {WS_TS}")
            a("s_mov_b64 exec, 0xffff")
            a(f"buffer_store_dword v4, {vL4}, {WS}, {sT0} offen")
        a(RAW("L_end:"))
        a("s_endpgm")

    def build(self):
        self.prologue()
        self.p1()
        if self.stop > 1:
            import gen2
            gen2.phase_t4(self)
            if self.stop > 2: gen2.phase_t5(self)
            if self.stop > 3: gen2.phase_t6(self)
        self.finish()
        f = Fin().run(self.L)
        hdr = open('header.txt').read()
        k = NAME + "_kernel"
        txt = hdr + f"; @launch grid=(256,1,1) block=(256,1,1) lds=163840\n"
        txt += f'.amdgcn_target "amdgcn-amd-amdhsa--gfx950"\n.text\n.globl {k}\n.p2align 8\n.type {k},@function\n{k}:\n'
        txt += "\n".join(f.out) + "\n"
        txt += f""".section .rodata,"a"
.p2align 6
.amdhsa_kernel {k}
  .amdhsa_next_free_vgpr 512
  .amdhsa_next_free_sgpr 102
  .amdhsa_accum_offset 256
  .amdhsa_group_segment_fixed_size 0
  .amdhsa_kernarg_size 80
  .amdhsa_user_sgpr_count 2
  .amdhsa_user_sgpr_kernarg_segment_ptr 1
  .amdhsa_system_sgpr_workgroup_id_x 1
  .amdhsa_float_denorm_mode_32 3
.end_amdhsa_kernel
"""
        self.fin = f
        return txt

if __name__ == "__main__":
    import argparse, json
    ap = argparse.ArgumentParser()
    ap.add_argument('-o', default='k.s'); ap.add_argument('--stop', type=int, default=99); ap.add_argument('--ts', action='store_true')
    ap.add_argument('--opts', default='{}')
    ar = ap.parse_args()
    g = G(ar.stop, ar.ts, json.loads(ar.opts))
    t = g.build()
    open(ar.o, 'w').write(t)
    open(ar.o + '.ts', 'w').write(json.dumps(g.tsn))
    print(f"{len(g.fin.out)} lines, nops {g.fin.nops}, waits {g.fin.waits}")
```

```python
import sys
from asmlib import *

NAME = "sequential_preLN__linear_attn_block__glu_gated_swiglu__prompt"
WS_PQ   = 0x0000000
WS_HC   = 0x0200000
WS_HH   = 0x0400000
WS_W13P = 0x0B00000
WS_W2P  = 0x0E80000
WS_KV   = 0x1040000
WS_Z    = 0x1048000
WS_CNT1 = WS_Z + 4096
WS_REP  = WS_Z + 8192
WS_WBAR = 0x1050000
WS_MEAN = 0x1052000
WS_SSQ  = 0x1060000
WS_FLG  = 0x1080000
WS_TS   = 0x1100000
WS_END  = 0x1200000
OOB = 0x40000000
SPIN = 200000
SX, SWQ, SWO, SW1, SW3, SW2, SOUT, SWS, SDBG = 8, 12, 16, 20, 24, 28, 32, 36, 40
def srd(n): return f"s[{n}:{n+3}]"
WS = srd(SWS)
sW, sR64, sC4, sB, sC8, sS0, sJ, sXC = 's3', 's4', 's5', 's6', 's7', 's44', 's45', 's46'
sT0, sT1, sT2, sT3 = 's47', 's48', 's49', 's50'
sXO, sWOFF = 's51', 's52'
sPK = 's53'
sEPS, sL2E = 's[54:55]', 's[56:57]'
sM1, sM2, sMV = 's[58:59]', 's[60:61]', 's[62:63]'
sR32, sU, sW2K, sW4K = 's64', 's65', 's66', 's67'
sT4, sT5, sT6, sT7 = 's68', 's69', 's70', 's71'
sERR, sD0 = 's72', 's73'
sD1, sD2, sRB5, sM5 = 's0', 's1', 's58', 's59'
sP6, sN8, sF0, sF1 = 's60', 's61', 's62', 's63'
TS0 = 74
vL16, vL4, vL0 = 'v16', 'v17', 'v43'

def v(a, n=1): return f"v{a}" if n == 1 else f"v[{a}:{a+n-1}]"
def ac(a, n=1): return f"a{a}" if n == 1 else f"a[{a}:{a+n-1}]"
M16 = "v_mfma_f32_16x16x32_bf16"
M32 = "v_mfma_f32_32x32x16_bf16"
def IL(lst): return [I(x) if isinstance(x, str) else x for x in lst]

class G:
    def __init__(self, stop=99, ts=False, opts=None):
        self.L = []; self.stop = stop; self.ts = ts; self.nts = 0; self.tsn = []
        self.o = dict(pfd=2, tsset='all'); self.o.update(opts or {})
        self.nlab = 0
    def a(self, x, tag=None):
        if isinstance(x, list): self.L.extend(IL(x))
        elif isinstance(x, str): self.L.append(I(x, tag))
        else: self.L.append(x)
    def stamp(self, name, sets=('all',)):
        if self.o.get('diag'):
            if name == 'start': self.a(f"s_memrealtime s[{TS0}:{TS0+1}]")
            if name == self.o['diag']: self.a(f"s_memrealtime s[{TS0+2}:{TS0+3}]")
            return
        if self.ts and self.nts < 14 and (self.o['tsset'] in sets or name in ('start', 'end')):
            self.a(f"{'s_memtime' if self.o.get('clk') else 's_memrealtime'} s[{TS0+2*self.nts}:{TS0+2*self.nts+1}]")
            self.tsn.append(name); self.nts += 1
    def spin(self, vdst, vaddr, rsrc, soff, mask, target, pre=False, cmp='gt'):
        a = self.a; self.nlab += 1; n = self.nlab
        ld = f"buffer_load_dword {vdst}, {vaddr}, {rsrc}, {soff} offen sc1"
        if not pre: a(ld)
        a(f"v_cmp_gt_u32 vcc, {target}, {vdst}")
        a(f"s_and_b32 vcc_lo, vcc_lo, {hex(mask)}")
        a(SCOPE_BEGIN())
        a(f"s_cbranch_scc0 L_ok{n}")
        a(f"s_mov_b32 {sT7}, {SPIN}")
        a(RAW(f"L_spin{n}:"))
        a(ld)
        a(f"v_cmp_gt_u32 vcc, {target}, {vdst}")
        a(f"s_sub_u32 {sT7}, {sT7}, 1")
        a(f"s_cbranch_scc1 L_fail{n}")
        a(f"s_and_b32 vcc_lo, vcc_lo, {hex(mask)}")
        a(f"s_cbranch_scc1 L_spin{n}")
        a(f"s_branch L_ok{n}")
        a(RAW(f"L_fail{n}:"))
        a(f"s_add_u32 {sERR}, {sERR}, 1")
        a(RAW(f"L_ok{n}:"))
        a(SCOPE_END())

    def prologue(self):
        a = self.a
        self.stamp('start')
        a("s_cmp_ge_u32 s2, 256")
        a("s_cbranch_scc1 L_end")
        for n, off in [(SX, 0), (SWQ, 8), (SWS, 72), (SWO, 16), (SDBG, 64), (SW1, 32), (SW3, 40), (SW2, 48), (SOUT, 56)]:
            a(f"s_load_dwordx2 s[{n}:{n+1}], s[0:1], {off}")
        a("s_getpc_b64 s[48:49]")
        a(RAW("L_pc:"))
        a("s_lshr_b32 s45, s2, 3")
        a("s_lshl_b32 s47, s45, 11")
        a("v_lshl_add_u32 v14, v0, 3, s47")
        a("v_min_u32 v14, L_end-L_pc, v14")
        a("global_load_dword v15, v14, s[48:49]")
        a("v_lshrrev_b32 v1, 6, v0")
        a("v_and_b32 v0, 63, v0")
        a(f"v_readfirstlane_b32 {sW}, v1")
        for n, sz in [(SX, 2097152), (SWQ, 1572864)]:
            a(f"s_mov_b32 s{n+2}, {sz}")
            a(f"s_mov_b32 s{n+3}, 0x20000")
        a(f"s_and_b32 {sXC}, s2, 7")
        a(f"s_and_b32 {sB}, s2, 1")
        a(f"s_and_b32 {sC4}, {sJ}, 3")
        a(f"s_lshr_b32 {sT0}, {sJ}, 2")
        a(f"s_lshr_b32 {sT1}, {sXC}, 1")
        a(f"s_lshl3_add_u32 {sR64}, {sT1}, {sT0}")
        a(f"s_lshl2_add_u32 {sC8}, {sB}, {sC4}")
        a(f"s_lshl1_add_u32 {sS0}, {sC4}, {sT0}")
        a(f"s_add_u32 {sS0}, {sS0}, {sB}")
        a(f"s_and_b32 {sS0}, {sS0}, 7")
        a("v_lshrrev_b32 v18, 3, v0")
        a("v_lshrrev_b32 v19, 4, v0")
        a("v_and_b32 v1, 7, v0")
        a(f"s_lshl_b32 {sT0}, {sR64}, 6")
        a(f"s_lshl_b32 {sT1}, {sW}, 4")
        a(f"s_add_u32 {sT0}, {sT0}, {sT1}")
        a(f"v_add_u32 v2, {sT0}, v18")
        a("v_xor_b32 v3, v1, v19")
        a("v_lshlrev_b32 v3, 4, v3")
        a("v_lshl_add_u32 v2, v2, 10, v3")
        a("v_xor_b32 v3, 64, v2")
        a("v_add_u32 v3, 7168, v3")
        a(f"v_add_u32 v4, {sT1}, v18")
        a("v_mul_u32_u24 v4, 3072, v4")
        a("v_and_b32 v5, 1, v19")
        a("v_lshlrev_b32 v5, 1, v5")
        a("v_xor_b32 v5, v5, v1")
        a("v_lshl_add_u32 v6, v5, 4, v4")
        a(f"s_lshl_b32 {sT2}, {sC8}, 7")
        a(f"v_add_u32 v6, {sT2}, v6")
        a("v_xor_b32 v7, 64, v6")
        a("v_add_u32 v7, 22528, v7")
        a("v_add_u32 v4, 1024, v6")
        a("v_add_u32 v5, 1024, v7")
        a(f"s_lshl_b32 {sXO}, {sS0}, 7")
        a(f"s_mul_i32 {sWOFF}, {sS0}, 196608")
        a(f"s_lshl_b32 {sW2K}, {sW}, 11")
        a(f"s_lshl_b32 {sW4K}, {sW}, 12")

    def dma_stage(self, t):
        slot = t % 6; tg = f"st{t}"
        return [I(f"s_add_u32 m0, {sW2K}, {t*8192}"),
                I(f"buffer_load_dwordx4 v2, {srd(SX)}, {sXO} offen lds", tg),
                I(f"buffer_load_dwordx4 v3, {srd(SX)}, {sXO} offen offset:1024 lds", tg),
                I(f"s_add_u32 m0, {sW4K}, {65536 + slot*16384}"),
                I(f"buffer_load_dwordx4 v4, {srd(SWQ)}, {sWOFF} offen lds", tg),
                I(f"s_add_u32 {sXO}, {sXO}, 128"),
                I(f"buffer_load_dwordx4 v4, {srd(SWQ)}, {sWOFF} offen offset:1024 lds", tg),
                I(f"s_and_b32 {sXO}, {sXO}, 1023"),
                I(f"buffer_load_dwordx4 v5, {srd(SWQ)}, {sWOFF} offen offset:2048 lds", tg),
                I(f"buffer_load_dwordx4 v5, {srd(SWQ)}, {sWOFF} offen offset:3072 lds", tg),
                I(f"s_mul_i32 {sWOFF}, {sXO}, 1536")]
    def dma_q(self, t):
        tg = f"q{t}"
        return [I(f"s_add_u32 m0, {sW4K}, {65536 + (2 + t//2)*16384 + (t & 1)*1024}"),
                I(f"s_add_u32 {sXO}, {sXO}, 128"),
                I(f"buffer_load_dwordx4 v6, {srd(SWQ)}, {sWOFF} offen lds", tg),
                I(f"s_and_b32 {sXO}, {sXO}, 1023"),
                I(f"buffer_load_dwordx4 v7, {srd(SWQ)}, {sWOFF} offen offset:2048 lds", tg),
                I(f"s_mul_i32 {sWOFF}, {sXO}, 1536")]
    def dma_wo(self, half):
        o = [I(f"s_lshl_b32 {sD0}, {sW}, 16"), I(f"s_lshl_b32 {sD1}, {sW}, 14")]
        for g in range(4):
            o.append(I(f"s_add_u32 m0, {sD1}, {(98304 if half else 0) + g*4096}"))
            o.append(I(f"s_add_u32 {sD2}, {sD0}, {half*262144 + g*16384}"))
            for n in range(4):
                o.append(I(f"buffer_load_dwordx4 v{2+n}, {srd(SWO)}, {sD2} offen offset:{n*1024} lds", f"wo{half}"))
        return o

    def p1(self):
        a = self.a
        PFD = self.o['pfd']
        ONES = 20
        aK, aV, aQ, cK, cV, cQ, aS, aSS = 24, 44, 60, 76, 80, 84, 88, 92
        FS = [96, 112]
        STAT = 65536
        self.stamp('karg', ('p1',))
        a(self.dma_stage(0))
        for n, sz in [(SWO, 524288), (SW1, 1835008), (SW3, 1835008), (SW2, 1835008), (SOUT, 2097152), (SWS, WS_END), (SDBG, 256)]:
            a(f"s_mov_b32 s{n+2}, {sz}")
            a(f"s_mov_b32 s{n+3}, 0x20000")
        a(f"v_lshlrev_b32 {vL16}, 4, v0")
        a(f"v_lshlrev_b32 {vL4}, 2, v0")
        a(f"s_lshl2_add_u32 {sU}, s2, {sW}")
        a(f"s_lshl1_add_u32 {sR32}, {sR64}, {sB}")
        a(f"s_mov_b32 {sERR}, 0")
        for i in range(4): a(f"v_mov_b32 v{164+i}, 0")
        a(SCOPE_BEGIN())
        a("s_cmp_ge_u32 s2, 8")
        a("s_cbranch_scc1 L_nozero")
        a(f"s_lshl_b32 {sT0}, {sU}, 10")
        a(f"s_add_u32 {sT1}, {sT0}, {WS_Z}")
        a(f"s_add_u32 {sT0}, {sT0}, {WS_KV}")
        a(f"buffer_store_dwordx4 v[164:167], {vL16}, {WS}, {sT0} offen sc1")
        a(f"buffer_store_dwordx4 v[164:167], {vL16}, {WS}, {sT1} offen sc1")
        a(RAW("L_nozero:"))
        a(SCOPE_END())
        for i in range(4): a(f"v_mov_b32 v{ONES+i}, 0x3f803f80")
        a("v_and_b32 v14, 15, v0")
        a("v_lshrrev_b32 v10, 1, v14")
        a("v_xor_b32 v10, v10, v19")
        a("v_lshlrev_b32 v10, 4, v10")
        a("v_lshl_add_u32 v10, v14, 7, v10")
        a("v_xor_b32 v11, 64, v10")
        a(f"v_add_u32 v12, {sW2K}, v10")
        a(f"v_add_u32 v13, {sW2K}, v11")
        a("v_bfe_u32 v8, v0, 3, 2")
        a(f"v_xor_b32 v8, {sW}, v8")
        a("v_lshlrev_b32 v8, 5, v8")
        a("v_lshl_add_u32 v8, v19, 11, v8")
        a("v_bfe_u32 v9, v0, 2, 2")
        a("v_lshl_add_u32 v8, v9, 7, v8")
        a("v_and_b32 v9, 3, v0")
        a("v_lshl_add_u32 v8, v9, 3, v8")
        a("v_add_u32 v8, 0x10000, v8")
        a("v_add_u32 v9, 0x10000, v8")
        a("s_mov_b32 s54, 0x358637bd"); a("s_mov_b32 s55, 0x358637bd")
        a("s_mov_b32 s56, 0x3fb8aa3b"); a("s_mov_b32 s57, 0x3fb8aa3b")
        a("s_mov_b32 s58, 0xaaaaaaaa"); a("s_mov_b32 s59, 0xaaaaaaaa")
        a("s_mov_b32 s60, 0xcccccccc"); a("s_mov_b32 s61, 0xcccccccc")
        a("s_mov_b32 s62, 0x00f0000f"); a("s_mov_b32 s63, 0xf0000f00")
        a("v_cmp_eq_u32 vcc, 0, v0")
        a(f"v_mov_b32 {vL0}, {OOB}")
        a(f"v_cndmask_b32 {vL0}, {vL0}, v164, vcc")
        for t in range(1, PFD): a(self.dma_stage(t))

        XA = lambda t, ks, bi: (2*t + ks) * 16 + 4 * bi
        def reads(t, ks):
            f = FS[ks]; slot = t % 6
            base = 'v8' if slot < 4 else 'v9'; so = (slot % 4) * 16384 + ks * 8192
            xa = 'v10' if ks == 0 else 'v11'; xs = 'v12' if ks == 0 else 'v13'
            r = [f"ds_read_b64_tr_b16 {v(f+4,2)}, {base} offset:{so}",
                 f"ds_read_b64_tr_b16 {v(f+6,2)}, {base} offset:{so+512}",
                 f"ds_read_b128 {ac(XA(t,ks,0),4)}, {xa} offset:{t*8192}",
                 f"ds_read_b64_tr_b16 {v(f+8,2)}, {base} offset:{so+1024}",
                 f"ds_read_b64_tr_b16 {v(f+10,2)}, {base} offset:{so+1536}"]
            for bi in range(1, 4): r.append(f"ds_read_b128 {ac(XA(t,ks,bi),4)}, {xa} offset:{t*8192+bi*2048}")
            r.append(f"ds_read_b128 {v(f,4)}, {xs} offset:{t*8192}")
            return IL(r)
        def mfmas(t, ks):
            f = FS[ks]; first = (t == 0 and ks == 0)
            c = lambda r: '0' if first else v(r, 4)
            m = [f"{M16} {v(cK,4)}, {v(ONES,4)}, {v(f+4,4)}, {c(cK)}",
                 f"{M16} {v(aK,4)}, {ac(XA(t,ks,0),4)}, {v(f+4,4)}, {c(aK)}",
                 f"{M16} {v(cV,4)}, {v(ONES,4)}, {v(f+8,4)}, {c(cV)}",
                 f"{M16} {v(aV,4)}, {ac(XA(t,ks,0),4)}, {v(f+8,4)}, {c(aV)}"]
            for bi in range(1, 4):
                m.append(f"{M16} {v(aK+4*bi,4)}, {ac(XA(t,ks,bi),4)}, {v(f+4,4)}, {c(aK+4*bi)}")
                m.append(f"{M16} {v(aV+4*bi,4)}, {ac(XA(t,ks,bi),4)}, {v(f+8,4)}, {c(aV+4*bi)}")
            m.append(f"{M16} {v(aS,4)}, {v(ONES,4)}, {v(f,4)}, {c(aS)}")
            m.append(f"{M16} {v(aSS,4)}, {v(f,4)}, {v(f,4)}, {c(aSS)}")
            return IL(m)
        sched = {t: [] for t in range(9)}
        for i in range(PFD, 8): sched[i - PFD] += self.dma_stage(i)
        for i in range(8): sched[min(8, max(8 - PFD + i // 3, 3 + i // 2))] += self.dma_q(i)
        RX = 128
        resid = IL([
            "v_and_b32 v160, 31, v0", f"s_lshl_b32 {sT0}, {sB}, 5", f"v_add_u32 v160, {sT0}, v160",
            f"s_lshr_b32 {sT1}, {sW}, 1", f"s_lshl1_add_u32 {sT0}, {sC4}, {sT1}", f"s_sub_u32 {sT0}, {sT0}, {sS0}",
            f"s_and_b32 {sT0}, {sT0}, 7", f"s_lshl_b32 {sT0}, {sT0}, 13", f"s_and_b32 {sT1}, {sW}, 1", f"s_lshl_b32 {sT1}, {sT1}, 2",
            "v_bfe_u32 v161, v160, 1, 3", f"v_xor_b32 v161, {sT1}, v161", "v_lshlrev_b32 v161, 4, v161",
            "v_lshl_add_u32 v161, v160, 7, v161", "v_lshrrev_b32 v162, 5, v0", "v_lshl_add_u32 v161, v162, 3, v161",
            f"v_add_u32 v161, {sT0}, v161", "v_xor_b32 v162, 16, v161", "v_xor_b32 v163, 32, v161", "v_xor_b32 v168, 48, v161",
            "v_lshlrev_b32 v160, 2, v160", f"v_add_u32 v160, {STAT+256}, v160"])
        residrd = IL([f"ds_read_b64 {v(RX+2*g,2)}, {['v161','v162','v163','v168'][g]}" for g in range(4)])
        for t in range(8):
            a(WAITVM(f"st{t}"))
            a(WAITLG0())
            a("s_barrier")
            if t in (0, 1, 2, 4, 6, 7): self.stamp(f'st{t}', ('p1',) if t else ('p1', 'all'))
            if t == 1:
                a(SCOPE_BEGIN())
                a(f"s_cmp_ge_u32 {sU}, 32"); a("s_cbranch_scc1 L_noz")
                a(f"s_cmp_lg_u32 {sW}, 0"); a("s_cbranch_scc1 L_noz")
                a(f"buffer_store_dword v{ONES}, {vL0}, {srd(SDBG)}, {sU} offen sc1")
                a(RAW("L_noz:"))
                a(SCOPE_END())
            sp = list(sched[t])
            if t == 7: sp.append(I(f"buffer_load_dword v171, {vL4}, {srd(SDBG)}, 0 offen sc1"))
            if t == 0:
                a(reads(0, 0))
                a(weave2(mfmas(0, 0), 2, [(0, reads(0, 1))], sp))
            else:
                extra = resid[:11] if t == 5 else resid[11:] if t == 6 else []
                a(weave2(mfmas(t-1, 1) + mfmas(t, 0), 2, [(0, reads(t, 0), 10), (12, reads(t, 1) + extra)], sp))
        a(weave2(mfmas(7, 1), 2, [(0, residrd)], sched[8]))
        self.stamp('kvgemm', ('p1', 'all'))
        a(f"s_lshl_b32 {sT0}, {sW}, 6")
        a(f"s_add_u32 {sT0}, {sT0}, {STAT}")
        a(f"v_lshl_add_u32 v163, v14, 2, {sT0}")
        a(f"v_mul_f32 v162, 0x3b000000, v{aS}")
        a(f"v_cndmask_b32 v161, v{aSS}, v{aSS+1}, {sM1}")
        a(f"v_cndmask_b32 v168, v{aSS+2}, v{aSS+3}, {sM1}")
        a("v_mul_f32 v169, v162, v162")
        a(f"v_cndmask_b32 v161, v161, v168, {sM2}")
        a("v_subrev_f32 v169, 0x3727c5ac, v169")
        a("v_mul_f32 v161, 0x3b000000, v161")
        a("v_sub_f32 v161, v161, v169")
        a("v_max_f32 v161, 0x3727c5ac, v161")
        a("v_rsq_f32 v161, v161")
        a(f"s_mov_b64 exec, {sMV}")
        a("ds_write2_b32 v163, v161, v162 offset0:0 offset1:64")
        a("s_mov_b64 exec, -1")
        a(f"v_lshlrev_b32 v163, 4, v19")
        a(f"v_add_u32 v163, {STAT}, v163")
        a(WAITLG0())
        a("s_barrier")
        R, Mn = 176, 192
        for bi in range(4):
            a(f"ds_read_b128 {v(Mn+4*bi,4)}, v163 offset:{256+bi*64}")
            a(f"ds_read_b128 {v(R+4*bi,4)}, v163 offset:{bi*64}")
        a("ds_read_b32 v42, v160")
        WB = 236
        raw = IL([
            "s_cmp_lt_u32 s2, 224", f"s_cselect_b32 {sT4}, 0, {OOB}", f"s_cselect_b32 {sT5}, {OOB}, 0",
            f"s_and_b32 {sT0}, {sU}, 31", f"s_mul_i32 {sT0}, {sT0}, {16*3584}", f"s_lshr_b32 {sT1}, {sU}, 5",
            f"s_lshl_b32 {sT1}, {sT1}, 7", f"s_add_u32 {sT0}, {sT0}, {sT1}",
            "v_mul_u32_u24 v172, 3584, v18", f"v_lshl_add_u32 v174, v1, 4, {sT4}", "v_add_u32 v172, v174, v172",
            f"s_mul_i32 {sPK}, {sW}, 6144", f"s_add_u32 {sPK}, {sPK}, {STAT+1024}", f"s_add_u32 {sT1}, {sT0}, {8*3584-1024}",
            f"s_mov_b32 m0, {sPK}", "v_lshl_add_u32 v173, v18, 10, v174",
            I(f"buffer_load_dwordx4 v172, {srd(SW1)}, {sT0} offen lds", "pk"),
            I(f"buffer_load_dwordx4 v172, {srd(SW1)}, {sT1} offen offset:1024 lds", "pk"),
            f"s_add_u32 m0, {sPK}, 2048",
            I(f"buffer_load_dwordx4 v172, {srd(SW3)}, {sT0} offen lds", "pk"),
            I(f"buffer_load_dwordx4 v172, {srd(SW3)}, {sT1} offen offset:1024 lds", "pk"),
            f"s_lshr_b32 {sT0}, {sU}, 3", f"s_lshl_b32 {sT0}, {sT0}, 14", f"s_and_b32 {sT1}, {sU}, 7", f"s_lshl_b32 {sT1}, {sT1}, 7",
            f"s_add_u32 {sT0}, {sT0}, {sT1}", f"s_add_u32 m0, {sPK}, 4096", f"s_add_u32 {sT1}, {sT0}, {8192-1024}",
            I(f"buffer_load_dwordx4 v173, {srd(SW2)}, {sT0} offen lds", "pk"),
            I(f"buffer_load_dwordx4 v173, {srd(SW2)}, {sT1} offen offset:1024 lds", "pk"),
            f"s_and_b32 {sT0}, s2, 31", f"s_lshl4_add_u32 {sT0}, {sT0}, {sW}", f"s_lshl_b32 {sT0}, {sT0}, 10",
            "v_bfe_u32 v172, v0, 2, 2", f"v_lshl_add_u32 v172, v172, 12, {sT5}",
            "v_and_b32 v173, 3, v0", "v_lshl_add_u32 v172, v173, 4, v172", "v_lshl_add_u32 v172, v19, 6, v172"] +
            [f"buffer_load_dwordx4 {v(WB+4*n,4)}, v172, {srd(SWO)}, {sT0} offen offset:{n*256}" for n in range(4)])
        PKf, VVf = 96, 104
        T = 208
        ep = []
        for bi in range(4):
            for h in range(2):
                r = 4*bi + 2*h
                ep += [f"v_pk_fma_f32 {v(aK+r,2)}, {v(Mn+r,2)}, {v(cK,2)}, {v(aK+r,2)} neg_lo:[1,0,0] neg_hi:[1,0,0]",
                       f"v_pk_fma_f32 {v(aV+r,2)}, {v(Mn+r,2)}, {v(cV,2)}, {v(aV+r,2)} neg_lo:[1,0,0] neg_hi:[1,0,0]",
                       f"v_pk_fma_f32 {v(aK+r,2)}, {v(aK+r,2)}, {v(R+r,2)}, {sEPS}",
                       f"v_pk_mul_f32 {v(aV+r,2)}, {v(aV+r,2)}, {v(R+r,2)}",
                       f"v_pk_mul_f32 {v(T,2)}, {v(aK+r,2)}, {sL2E}",
                       f"v_max_f32 v{aK+r}, s54, v{aK+r}",
                       f"v_exp_f32 v{T}, v{T} clamp",
                       f"v_exp_f32 v{T+1}, v{T+1} clamp",
                       f"v_max_f32 v{aK+r+1}, s54, v{aK+r+1}",
                       f"v_cvt_pk_bf16_f32 v{VVf+2*bi+h}, v{aV+r}, v{aV+r+1}",
                       f"v_pk_add_f32 {v(aK+r,2)}, {v(aK+r,2)}, {v(T,2)}",
                       f"v_cvt_pk_bf16_f32 v{PKf+2*bi+h}, v{aK+r}, v{aK+r+1}"]
        gs = groups(raw)
        a(gs[0])
        a(weave2(IL(ep), 20, [], [x for g in gs[1:6] for x in g], 10))
        KVD, ZD = 24, 28
        a(f"{M16} {v(KVD,4)}, {v(VVf,4)}, {v(PKf,4)}, 0")
        a(f"{M16} {v(ZD,4)}, {v(ONES,4)}, {v(PKf,4)}, 0")
        a(f"{M16} {v(KVD,4)}, {v(VVf+4,4)}, {v(PKf+4,4)}, {v(KVD,4)}")
        a(f"{M16} {v(ZD,4)}, {v(ONES,4)}, {v(PKf+4,4)}, {v(ZD,4)}")
        a("v_bfe_u32 v161, v0, 2, 1")
        a("v_lshlrev_b32 v161, 9, v161")
        a("v_bfe_u32 v162, v0, 3, 1")
        a("v_lshl_add_u32 v161, v162, 6, v161")
        a("v_and_b32 v162, 3, v0")
        a("v_lshl_add_u32 v161, v162, 2, v161")
        a("v_lshl_add_u32 v161, v19, 4, v161")
        a(f"v_lshl_add_u32 v162, v19, 28, {vL4}")
        a(f"s_lshl2_add_u32 {sT6}, {sC8}, {sW}")
        a(f"s_lshl_b32 {sT2}, {sT6}, 10")
        a(f"s_add_u32 {sT2}, {sT2}, {WS_KV}")
        a(f"s_lshl_b32 {sT3}, {sT6}, 7")
        a(f"s_add_u32 {sT3}, {sT3}, {WS_Z}")
        self.spin('v171', vL4, srd(SDBG), '0', 0xff, 1, pre=True)
        for i in range(4):
            a(f"buffer_atomic_add_f32 v{KVD+i}, v161, {WS}, {sT2} offen offset:{i*128}")
        a(f"buffer_atomic_add_f32 v{ZD}, v162, {WS}, {sT3} offen")
        self.stamp('atom', ('p1', 'all'))
        a(WAITVM("q7"))
        a("s_barrier")
        QW = [112, 116, 120]
        def qreads(n):
            t, ks = n // 2, n % 2
            f = QW[n % 3]; slot = 2 + t // 2
            base = 'v8' if slot < 4 else 'v9'; so = (slot % 4) * 16384 + ks * 8192 + (t & 1) * 1024
            return IL([f"ds_read_b64_tr_b16 {v(f,2)}, {base} offset:{so}", f"ds_read_b64_tr_b16 {v(f+2,2)}, {base} offset:{so+512}"])
        def qmf(n):
            f = QW[n % 3]; c = lambda r: '0' if n == 0 else v(r, 4)
            m = [f"{M16} {v(cQ,4)}, {v(f,4)}, {v(ONES,4)}, {c(cQ)}"]
            for bi in range(4): m.append(f"{M16} {v(aQ+4*bi,4)}, {v(f,4)}, {ac(16*n+4*bi,4)}, {c(aQ+4*bi)}")
            return IL(m)
        PB = 212
        woprep = IL(["v_lshlrev_b32 v2, 10, v19", f"s_lshl_b32 {sD0}, {sC4}, 8", f"v_lshl_add_u32 v2, v14, 4, v2", f"v_add_u32 v2, {sD0}, v2"] +
                    [x for n in (1, 2, 3) for x in (f"v_xor_b32 v{2+n}, {n*64}, v2", f"v_add_u32 v{2+n}, {n*3072}, v{2+n}")])
        flagz = IL([f"s_lshl_b32 {sD2}, {sU}, 9", f"s_add_u32 {sD2}, {sD2}, {WS_FLG}", "v_lshlrev_b32 v175, 3, v0",
                    f"buffer_store_dwordx2 v[164:165], v175, {WS}, {sD2} offen sc1"])
        pkprep = IL([
            "v_bfe_u32 v172, v0, 2, 2", "v_bfe_u32 v173, v0, 5, 1", "v_lshl_add_u32 v172, v173, 2, v172", "v_lshlrev_b32 v172, 7, v172",
            "v_and_b32 v173, 3, v0", "v_lshl_add_u32 v172, v173, 3, v172", f"v_add_u32 v172, {sPK}, v172",
            "v_bfe_u32 v174, v0, 4, 1", "v_lshl_add_u32 v173, v174, 5, v172", "v_lshl_add_u32 v172, v174, 11, v172",
            f"v_add_u32 v174, {sT4}, {vL16}",
            f"s_lshr_b32 {sT0}, {sU}, 5", f"s_lshl_b32 {sT0}, {sT0}, 17", f"s_and_b32 {sT1}, {sU}, 31", f"s_lshl_b32 {sT1}, {sT1}, 10",
            f"s_add_u32 {sT0}, {sT0}, {sT1}", f"s_add_u32 {sT0}, {sT0}, {WS_W13P}",
            f"s_and_b32 {sT2}, {sU}, 7", f"s_mul_i32 {sT2}, {sT2}, {2*114688}", f"s_lshr_b32 {sT1}, {sU}, 3", f"s_lshl_b32 {sT1}, {sT1}, 10",
            f"s_add_u32 {sT2}, {sT2}, {sT1}", f"s_add_u32 {sT2}, {sT2}, {WS_W2P}"])
        pkrd = [WAITVM("pk")]
        for g in range(4):
            pkrd += IL([f"ds_read_b64_tr_b16 {v(PB+4*g,2)}, v172 offset:{g*32}", f"ds_read_b64_tr_b16 {v(PB+4*g+2,2)}, v172 offset:{g*32+1024}"])
        for f in range(2):
            pkrd += IL([f"ds_read_b64_tr_b16 {v(PB+16+4*f,2)}, v173 offset:{4096+f*64}", f"ds_read_b64_tr_b16 {v(PB+16+4*f+2,2)}, v173 offset:{4096+f*64+1024}"])
        pkst = []
        for g in range(4):
            if g: pkst.append(I(f"s_add_u32 {sT0}, {sT0}, 32768"))
            pkst.append(I(f"buffer_store_dwordx4 {v(PB+4*g,4)}, v174, {WS}, {sT0} offen sc1"))
        pkst += IL([f"buffer_store_dwordx4 {v(PB+16,4)}, v174, {WS}, {sT2} offen sc1", f"s_add_u32 {sT2}, {sT2}, 114688",
                    f"buffer_store_dwordx4 {v(PB+20,4)}, v174, {WS}, {sT2} offen sc1"])
        main = []; dense = []
        for n in range(16):
            if n + 2 < 16: dense.append((5*n, qreads(n+2), 5*n+7))
            if n == 1: dense.append((5*n, pkprep[:8]))
            if n == 2: dense.append((5*n, pkprep[8:16]))
            if n == 3: dense.append((5*n, pkprep[16:]))
            if n == 9: dense.append((5*n, pkrd[:7]))
            if n == 10: dense.append((5*n, pkrd[7:]))
            main += qmf(n)
        a(qreads(0)); a(qreads(1))
        wo0 = self.dma_wo(0)
        wbld = [x for g in gs[6:] for x in g]
        a(wbld[:8])
        a(wbld[8:])
        sp1 = woprep + flagz + wo0
        g1 = groups(sp1)
        part1 = weave2(main[:56], 2, [d for d in dense if d[0] < 56], [x for g in g1[:13] for x in g], 2)
        part2 = weave2(main[56:], 2, [(d[0]-56, d[1], d[2]-56) for d in dense if d[0] >= 56], pkst, 0)
        a(part1); a(part2)
        self.stamp('qgemm', ('p1', 'all'))
        WD = 32
        for n in range(4):
            a(f"{M16} {v(WD,4)}, {v(WB+4*n,4)}, {v(ONES,4)}, {'0' if n == 0 else v(WD,4)}")
        a(f"v_lshlrev_b32 v163, 2, v14")
        a(f"v_add_u32 v163, {STAT}, v163")
        for bi in range(4):
            a(f"ds_read2_b32 {v(R+2*bi,2)}, v163 offset0:{16*bi} offset1:{64+16*bi}")
        a(f"s_lshl_b32 {sT0}, {sR64}, 16")
        a(f"s_lshl_b32 {sT1}, {sT6}, 10")
        a(f"s_add_u32 {sT0}, {sT0}, {sT1}")
        a(f"s_add_u32 {sT1}, {sT0}, 32768")
        a(f"s_and_b32 {sT2}, s2, 31"); a(f"s_lshl_b32 {sT2}, {sT2}, 7")
        a(f"s_and_b32 {sT3}, {sW}, 1"); a(f"s_lshl4_add_u32 {sT2}, {sT3}, {sT2}")
        a(f"s_lshr_b32 {sT3}, {sW}, 1"); a(f"s_lshl3_add_u32 {sT2}, {sT3}, {sT2}")
        a(f"s_add_u32 {sT2}, {sT2}, {WS_WBAR}")
        a(f"v_lshl_add_u32 v172, v19, 1, {sT5}")
        a(f"v_lshl_add_u32 v172, v14, 26, v172")
        a(f"v_pk_add_f32 {v(WD,2)}, {v(WD,2)}, {v(WD+2,2)}")
        a(f"v_add_f32 v{WD}, v{WD}, v{WD+1}")
        a(f"v_mul_f32 v{WD}, 0x3b000000, v{WD}")
        a(f"v_cvt_pk_bf16_f32 v{WD}, v{WD}, v{WD}")
        a(f"buffer_store_short v{WD}, v172, {WS}, {sT2} offen sc1")
        QF = 96
        ep = []
        for bi in range(4):
            for h in range(2):
                r = 4*bi + 2*h
                ep += [f"v_pk_fma_f32 {v(aQ+r,2)}, {v(cQ+2*h,2)}, {v(R+2*bi,2)}, {v(aQ+r,2)} op_sel:[0,1,0] op_sel_hi:[1,1,1] neg_lo:[1,0,0] neg_hi:[1,0,0]",
                       f"v_pk_fma_f32 {v(aQ+r,2)}, {v(aQ+r,2)}, {v(R+2*bi,2)}, {sEPS} op_sel_hi:[1,0,1]",
                       f"v_pk_mul_f32 {v(T,2)}, {v(aQ+r,2)}, {sL2E}",
                       f"v_max_f32 v{aQ+r}, s54, v{aQ+r}",
                       f"v_exp_f32 v{T}, v{T} clamp",
                       f"v_exp_f32 v{T+1}, v{T+1} clamp",
                       f"v_max_f32 v{aQ+r+1}, s54, v{aQ+r+1}",
                       f"v_pk_add_f32 {v(aQ+r,2)}, {v(aQ+r,2)}, {v(T,2)}",
                       f"v_cvt_pk_bf16_f32 v{QF+2*bi+h}, v{aQ+r}, v{aQ+r+1}"]
            if bi & 1:
                b0 = QF + 2*(bi-1)
                ep += [f"v_permlane16_swap_b32 v{b0}, v{b0+2}", f"v_permlane16_swap_b32 v{b0+1}, v{b0+3}",
                       I(f"buffer_store_dwordx4 {v(b0,4)}, {vL16}, {WS}, {sT0 if bi == 1 else sT1} offen sc1", "pq")]
        a(ep)
        a([x for g in g1[13:] for x in g])
        A4 = 24
        for g in range(4):
            for d in range(2):
                a(f"v_lshlrev_b32 v{A4+4*g+2*d}, 16, v{RX+2*g+d}")
                a(f"v_and_b32 v{A4+4*g+2*d+1}, 0xffff0000, v{RX+2*g+d}")
                a(f"v_pk_add_f32 {v(A4+4*g+2*d,2)}, {v(A4+4*g+2*d,2)}, v[42:43] op_sel_hi:[1,0] neg_lo:[0,1] neg_hi:[0,1]")
        a(WAITVM("pq"))
        a(WAITLG0())
        a("s_barrier")
        self.stamp('p1end', ('p1', 'all'))

    def finish(self):
        a = self.a
        self.stamp('end')
        if self.o.get('diag'):
            a(WAITVM0()); a(WAITLG0())
            a(f"s_add_u32 s{TS0+2}, s{TS0+2}, 4000")
            a(RAW("L_diag:"))
            a(f"s_memrealtime s[{TS0+4}:{TS0+5}]")
            a("s_waitcnt lgkmcnt(0)")
            a(f"s_sub_u32 s{TS0+6}, s{TS0+4}, s{TS0+2}")
            a(f"s_cmp_lt_i32 s{TS0+6}, 0")
            a("s_cbranch_scc1 L_diag")
        if self.ts:
            a(WAITLG0())
            for i in range(self.nts):
                a(f"v_writelane_b32 v4, s{TS0+2*i}, {i}")
            a(f"v_writelane_b32 v4, {sERR}, 15")
            a(f"s_lshl_b32 {sT0}, {sU}, 6")
            a(f"s_add_u32 {sT0}, {sT0}, {WS_TS}")
            a("s_mov_b64 exec, 0xffff")
            a(f"buffer_store_dword v4, {vL4}, {WS}, {sT0} offen")
        a(RAW("L_end:"))
        a("s_endpgm")

    def build(self):
        self.prologue()
        self.p1()
        if self.stop > 1:
            import gen2
            gen2.phase_t4(self)
            if self.stop > 2: gen2.phase_t5(self)
            if self.stop > 3: gen2.phase_t6(self)
        self.finish()
        f = Fin().run(self.L)
        hdr = open('header.txt').read()
        k = NAME + "_kernel"
        txt = hdr + f"; @launch grid=(256,1,1) block=(256,1,1) lds=163840\n"
        txt += f'.amdgcn_target "amdgcn-amd-amdhsa--gfx950"\n.text\n.globl {k}\n.p2align 8\n.type {k},@function\n{k}:\n'
        txt += "\n".join(f.out) + "\n"
        txt += f""".section .rodata,"a"
.p2align 6
.amdhsa_kernel {k}
  .amdhsa_next_free_vgpr 512
  .amdhsa_next_free_sgpr 102
  .amdhsa_accum_offset 256
  .amdhsa_group_segment_fixed_size 0
  .amdhsa_kernarg_size 80
  .amdhsa_user_sgpr_count 2
  .amdhsa_user_sgpr_kernarg_segment_ptr 1
  .amdhsa_system_sgpr_workgroup_id_x 1
  .amdhsa_float_denorm_mode_32 3
.end_amdhsa_kernel
"""
        self.fin = f
        return txt

if __name__ == "__main__":
    import argparse, json
    ap = argparse.ArgumentParser()
    ap.add_argument('-o', default='k.s'); ap.add_argument('--stop', type=int, default=99); ap.add_argument('--ts', action='store_true')
    ap.add_argument('--opts', default='{}')
    ar = ap.parse_args()
    g = G(ar.stop, ar.ts, json.loads(ar.opts))
    t = g.build()
    open(ar.o, 'w').write(t)
    open(ar.o + '.ts', 'w').write(json.dumps(g.tsn))
    print(f"{len(g.fin.out)} lines, nops {g.fin.nops}, waits {g.fin.waits}")
```

```python
import re

REG_RE = re.compile(r'(?<![\w.])([vas])(?:\[(\d+):(\d+)\]|(\d+))(?![\w])')
TRANS = ('v_exp_f32', 'v_log_f32', 'v_rcp_f32', 'v_rsq_f32', 'v_sqrt_f32', 'v_sin_f32', 'v_cos_f32')

def regs_of(op):
    out = set()
    op = op.strip()
    for m in REG_RE.finditer(op):
        k = m.group(1)
        if m.group(4) is not None:
            out.add((k, int(m.group(4))))
        else:
            for i in range(int(m.group(2)), int(m.group(3)) + 1):
                out.add((k, i))
    if re.search(r'\bvcc(_lo|_hi)?\b', op): out |= {('s', 'vcc')}
    if re.search(r'\bm0\b', op): out |= {('s', 'm0')}
    if re.search(r'\bexec(_lo|_hi)?\b', op): out |= {('s', 'exec')}
    return out

class I:
    __slots__ = ('text', 'mn', 'kind', 'dst', 'src', 'tag', 'A', 'B', 'C', 'passes', 'wide', 'data')
    def __init__(self, text, tag=None):
        self.text = text; self.tag = tag
        t = text.split(';')[0].strip()
        parts = t.split(None, 1)
        mn = parts[0]; self.mn = mn
        rest = parts[1] if len(parts) > 1 else ''
        ops = [o.strip() for o in rest.split(',')] if rest else []
        self.dst = set(); self.src = set(); self.A = self.B = self.C = set(); self.passes = 0
        self.wide = False; self.data = set()
        R = [regs_of(o) for o in ops]
        allr = set().union(*R) if R else set()
        if mn.startswith('v_mfma'):
            self.kind = 'mfma'
            self.dst = R[0]; self.A = R[1]; self.B = R[2]; self.C = R[3]
            self.src = R[1] | R[2] | R[3]
            self.passes = 8 if '32x32x16' in mn else 4
        elif mn.startswith('v_'):
            self.kind = 'valu'
            if mn.startswith('v_nop'):
                pass
            elif mn.startswith('v_permlane') and 'swap' in mn:
                self.dst = R[0] | R[1]; self.src = R[0] | R[1]
            elif mn.startswith('v_cmp'):
                self.dst = R[0]; self.src = set().union(*R[1:])
            elif mn.startswith(('v_add_co', 'v_sub_co', 'v_addc_co')):
                self.dst = R[0] | R[1]; self.src = set().union(*R[2:])
            else:
                self.dst = R[0]; self.src = set().union(*R[1:]) if len(R) > 1 else set()
                if mn.startswith(('v_fmac', 'v_dot2c', 'v_writelane')) or 'dpp' in mn or 'row_' in t or 'quad_perm' in t:
                    self.src |= R[0]
        elif mn.startswith('ds_'):
            self.kind = 'ds'
            if mn.startswith('ds_read') or mn.startswith('ds_bpermute') or mn.startswith('ds_swizzle'):
                self.dst = R[0]; self.src = set().union(*R[1:])
            else:
                self.src = allr
        elif mn.startswith(('buffer_', 'global_')):
            self.kind = 'vmem'
            islds = re.search(r'\blds\b', t) is not None
            if 'load' in mn:
                if islds:
                    self.src = allr | {('s', 'm0')}
                else:
                    self.dst = R[0]; self.src = set().union(*R[1:])
            elif 'atomic' in mn:
                self.src = allr
                if re.search(r'\bsc0\b', t): self.dst = R[0]
            else:
                self.src = allr
                if 'x4' in mn or 'x3' in mn:
                    self.wide = True
                    self.data = R[0] if mn.startswith('buffer_') else R[1]
        elif mn.startswith(('s_load', 's_memtime', 's_memrealtime')):
            self.kind = 'smem'; self.dst = R[0]; self.src = set().union(*R[1:]) if len(R) > 1 else set()
        elif mn in ('s_nop', 's_waitcnt', 's_barrier', 's_sleep', 's_setprio', 's_endpgm') or mn.startswith(('s_cbranch', 's_branch')):
            self.kind = 'ctl'
        elif mn.startswith('s_'):
            self.kind = 'salu'
            if mn.startswith(('s_cmp', 's_bitcmp')):
                self.src = allr
            else:
                self.dst = R[0] if R else set(); self.src = set().union(*R[1:]) if len(R) > 1 else set()
                if 'saveexec' in mn: self.dst |= {('s', 'exec')}
        else:
            raise ValueError('unknown instr ' + text)

class Op:
    def __init__(self, name, arg=None): self.name = name; self.arg = arg
def WAITVM(tag): return Op('waitvm', tag)
def WAITVM0(): return Op('waitvm0')
def WAITLG0(): return Op('waitlg0')
def WAITLG(tag): return Op('waitlg', tag)
def RAW(text): return Op('raw', text)
def SCOPE_BEGIN(): return Op('sb')
def SCOPE_END(): return Op('se')
def FLUSH(): return Op('flush')

def vreg(rs): return {r for r in rs if r[0] in 'va'}
def sreg(rs): return {r for r in rs if r[0] == 's'}

class Fin:
    def __init__(self):
        self.out = []
        self.vm = []
        self.lg = []
        self.smem = []
        self.hist = []
        self.clk = 0
        self.stack = []
        self.nops = 0
        self.waits = 0
        self.seen = set(); self.waited = set()
    def _emit(self, text, states=1):
        self.out.append('    ' + text); self.clk += states
    def _wait(self, vm=None, lg=None):
        s = []
        if vm is not None:
            n = min(vm, 63); s.append(f'vmcnt({n})'); self.vm = self.vm[len(self.vm) - n:] if n else []
        if lg is not None:
            n = min(lg, 15)
            if self.smem: n = 0; self.smem = []
            s.append(f'lgkmcnt({n})'); self.lg = self.lg[len(self.lg) - n:] if n else []
        self._emit('s_waitcnt ' + ' '.join(s)); self.waits += 1
    def need(self, ins):
        req = 0
        rd = ins.src; wr = ins.dst
        isperm = ins.mn.startswith('v_permlane'); isdpp = ('dpp' in ins.mn or 'row_' in ins.text or 'quad_perm' in ins.text)
        isrl = ins.mn.startswith(('v_readlane', 'v_readfirstlane'))
        for (c, p) in self.hist:
            dist = self.clk - c - 1
            w = 0
            if p.kind == 'valu':
                pv = vreg(p.dst); ps = sreg(p.dst)
                if ins.kind == 'mfma' and pv & rd: w = max(w, 2)
                if (isperm or isdpp) and pv & rd: w = max(w, 2)
                if isrl and pv & rd: w = max(w, 1)
                if p.mn.startswith(TRANS) and pv & rd: w = max(w, 1)
                if p.mn.startswith('v_dot') and pv & (rd | wr):
                    same = ins.mn == p.mn
                    w = max(w, 0 if same else 3)
                if ps & rd:
                    if ins.kind in ('valu', 'mfma'): w = max(w, 4 if ins.mn.startswith(('v_readlane', 'v_writelane')) else 2)
                    if ins.kind == 'vmem': w = max(w, 5)
                    if ins.kind in ('salu', 'smem'): w = max(w, 1)
            elif p.kind == 'mfma':
                big = p.passes == 8
                if ins.kind == 'mfma':
                    if p.dst & (ins.A | ins.B): w = max(w, 12 if big else 8)
                    if p.dst & ins.C and not (p.dst == ins.C and p.mn == ins.mn): w = max(w, 10 if big else 6)
                    if p.dst & ins.dst and not (p.dst == ins.dst and p.mn == ins.mn): w = max(w, 10 if big else 6)
                elif ins.kind in ('valu', 'ds', 'vmem'):
                    if p.dst & (rd | wr): w = max(w, 12 if big else 8)
                    if p.C & wr: w = max(w, 7 if big else 3)
            elif p.kind == 'salu':
                if ('s', 'm0') in p.dst and ('s', 'm0') in rd and ins.kind in ('vmem', 'ds'): w = max(w, 1)
            elif p.kind == 'vmem' and p.wide:
                if p.data & wr: w = max(w, 2)
            if w - dist > req: req = w - dist
        return req
    def flush(self):
        req = 0
        for (c, p) in self.hist:
            dist = self.clk - c - 1
            w = {'valu': 5 if sreg(p.dst) else 3, 'mfma': 12 if p.passes == 8 else 8, 'salu': 1, 'vmem': 2}.get(p.kind, 0)
            req = max(req, w - dist)
        if req > 0:
            self._emit(f's_nop {req-1}', req); self.nops += req
    def add(self, x):
        if isinstance(x, str): x = I(x)
        if isinstance(x, Op):
            n = x.name
            if n == 'raw': self.out.append(x.arg)
            elif n == 'waitvm':
                if x.arg not in self.seen: raise ValueError('wait for tag never issued: ' + x.arg)
                self.waited.add(x.arg)
                idx = [i for i, o in enumerate(self.vm) if o.tag == x.arg]
                if idx: self._wait(vm=len(self.vm) - 1 - idx[-1])
            elif n == 'waitlg':
                idx = [i for i, o in enumerate(self.lg) if o.tag == x.arg]
                if idx: self._wait(lg=len(self.lg) - 1 - idx[-1])
            elif n == 'waitvm0':
                self._wait(vm=0)
            elif n == 'waitlg0':
                if self.lg or self.smem: self._wait(lg=0)
            elif n == 'flush': self.flush()
            elif n == 'sb':
                self.flush(); self.stack.append((list(self.vm), list(self.lg), list(self.smem)))
            elif n == 'se':
                saved = self.stack.pop()
                for o in self.vm + self.lg + self.smem:
                    if o.dst and not any(o is s for s in saved[0] + saved[1] + saved[2]):
                        raise ValueError('load left pending at scope end: ' + o.text)
                self.flush(); self.vm, self.lg, self.smem = saved
            return
        ins = x
        touch = ins.src | ins.dst
        nv = nl = None
        for i in range(len(self.vm) - 1, -1, -1):
            if self.vm[i].dst & touch:
                nv = len(self.vm) - 1 - i; break
        for i in range(len(self.lg) - 1, -1, -1):
            if self.lg[i].dst & touch:
                nl = len(self.lg) - 1 - i; break
        if any(o.dst & touch for o in self.smem): nl = 0
        if nv is not None or nl is not None: self._wait(nv, nl)
        req = self.need(ins)
        if req > 0:
            self._emit(f's_nop {req-1}', req); self.nops += req
        self.hist.append((self.clk, ins))
        states = 1
        if ins.mn == 's_nop': states = int(ins.text.split()[1]) + 1
        self._emit(ins.text, states)
        self.hist = [(c, p) for (c, p) in self.hist if self.clk - c <= 14]
        if ins.tag:
            if ins.tag in self.waited: raise ValueError('tag issued after its wait: ' + ins.tag)
            self.seen.add(ins.tag)
        if ins.kind == 'vmem': self.vm.append(ins)
        elif ins.kind == 'ds': self.lg.append(ins)
        elif ins.kind == 'smem': self.smem.append(ins)
        if ins.mn == 's_waitcnt':
            m = re.search(r'vmcnt\((\d+)\)', ins.text)
            if m:
                n = int(m.group(1)); self.vm = self.vm[len(self.vm) - n:] if n and n < len(self.vm) else ([] if n == 0 else self.vm)
            m = re.search(r'lgkmcnt\((\d+)\)', ins.text)
            if m and int(m.group(1)) == 0: self.lg = []; self.smem = []
    def run(self, lst):
        for x in lst: self.add(x)
        return self

def weave(main, fill, per=None, start=0, cost=None):
    out = []; fi = 0
    n = len(main)
    def c(x):
        if isinstance(x, Op): return 1 if x.name.startswith('wait') else 0
        t = x.text if isinstance(x, I) else x
        return 2 if t.startswith(TRANS) else 1
    for i, m in enumerate(main):
        out.append(m)
        if i < start: continue
        budget = per[i] if isinstance(per, (list, tuple)) else per
        while fi < len(fill) and budget >= c(fill[fi]):
            budget -= c(fill[fi]); out.append(fill[fi]); fi += 1
    out.extend(fill[fi:])
    return out


def icost(x):
    if isinstance(x, Op): return 1 if x.name.startswith('wait') else 0
    t = x.text if isinstance(x, I) else x
    if t.startswith('v_mfma'): return 2
    return 2 if t.startswith(TRANS) else 1

def groups(lst):
    out = []; cur = []
    for x in lst:
        cur.append(x)
        if isinstance(x, I) and x.kind == 'vmem':
            out.append(cur); cur = []
    if cur:
        if out: out[-1].extend(cur)
        else: out.append(cur)
    return out

def weave2(main, per, dense=(), spread=(), s0=0, s1=None):
    n = len(main); s1 = n if s1 is None else s1
    gs = groups(list(spread))
    at = {}
    for k, g in enumerate(gs):
        pos = s0 + (k * (s1 - s0)) // len(gs)
        at.setdefault(pos, []).extend(g)
    dl = [(d[2] if len(d) > 2 else 10**9) for d in dense]
    dq = [(d[0], list(d[1]), min(dl[k:])) for k, d in enumerate(dense)]
    out = []; carry = []
    for i, m in enumerate(main):
        while dq and dq[0][2] <= i:
            out.extend(dq[0][1]); dq.pop(0)
        out.append(m)
        budget = per
        carry.extend(at.get(i, []))
        while carry and budget > 0:
            x = carry.pop(0); out.append(x); budget -= icost(x)
        while dq and dq[0][0] <= i:
            it = dq[0][1]
            while it and budget >= icost(it[0]):
                x = it.pop(0); out.append(x); budget -= icost(x)
            if it: break
            dq.pop(0)
    out.extend(carry)
    for d in dq: out.extend(d[1])
    return out
```

```python
from asmlib import *
from gen import *

O_LDS = 131072
ZW_LDS = 131072 - 4096
MP_LDS = 131072 - 5120

def w13_dma(nb, slot, groups_, tag):
    o = []
    for g in groups_:
        o.append(I(f"s_add_u32 m0, {sW4K}, {slot*32768 + g*16384}"))
        o.append(I(f"s_add_u32 {sD1}, {sWG1 if g else sWG0}, {nb*32768}"))
        for n in range(4):
            o.append(I(f"buffer_load_dwordx4 {vL16}, {WS}, {sD1} offen offset:{n*1024} sc1 lds", tag))
    return o

def phase_t4(G):
    a = G.a
    a(SCOPE_BEGIN())
    a(f"s_cmp_lg_u32 {sW}, 0"); a("s_cbranch_scc1 L_arr")
    a(G.arrive(0))
    a(RAW("L_arr:"))
    a(SCOPE_END())
    G.stamp('arr', ('t4',))
    a(G.tail)
    a("v_bfe_u32 v8, v0, 2, 2")
    a(f"v_xor_b32 v9, {sW}, v8")
    a("v_lshlrev_b32 v9, 6, v9")
    a("v_lshl_add_u32 v8, v8, 10, v9")
    a("v_lshrrev_b32 v10, 5, v0")
    a("v_lshl_add_u32 v8, v10, 8, v8")
    a("v_bfe_u32 v11, v0, 4, 1")
    a("v_lshl_add_u32 v8, v11, 5, v8")
    a("v_and_b32 v9, 3, v0")
    a("v_lshl_add_u32 v8, v9, 3, v8")
    a("v_add_u32 v9, 98304, v8")
    a(f"s_lshr_b32 {sT0}, {sXC}, 2"); a(f"s_lshr_b32 {sT1}, {sJ}, 2"); a(f"s_lshl3_add_u32 {sT0}, {sT0}, {sT1}")
    a(f"s_lshl2_add_u32 {sRB5}, {sT0}, {sW}")
    a(f"s_and_b32 {sT0}, {sXC}, 3"); a(f"s_lshl2_add_u32 {sM5}, {sT0}, {sC4}")
    a(f"s_lshr_b32 {sT0}, {sJ}, 3"); a(f"s_lshl2_add_u32 {sP6}, {sXC}, {sT0}")
    a(f"s_and_b32 {sN8}, {sJ}, 7")
    a(prep56(G))
    a(f"s_mul_i32 {sD0}, {sM5}, {7*32768}"); a(f"s_add_u32 {sD0}, {sD0}, {WS_W13P}")
    a(f"s_add_u32 {sT0}, {sW4K}, {sHCO}"); a(f"s_and_b32 {sT0}, {sT0}, 0x7fff"); a(f"s_add_u32 {sWG0}, {sD0}, {sT0}")
    a(f"s_xor_b32 {sT0}, {sT0}, 0x4000"); a(f"s_add_u32 {sWG1}, {sD0}, {sT0}")
    a("v_and_b32 v12, 3, v0"); a("v_lshlrev_b32 v12, 4, v12")
    a("v_bfe_u32 v13, v0, 2, 3"); a("v_lshl_add_u32 v12, v13, 7, v12"); a("v_lshl_add_u32 v12, v10, 6, v12")
    a("v_bfe_u32 v13, v0, 2, 1"); a(f"v_mul_u32_u24 v13, {WS_WBAR - WS_Z - 64}, v13"); a(f"v_add_u32 v13, {vL16}, v13")
    a(f"s_lshl_b32 {sT2}, {sW}, 10"); a(f"s_add_u32 {sT3}, {sT2}, {ZW_LDS}")
    a("v_lshlrev_b32 v14, 5, v10"); a("v_lshl_add_u32 v14, v11, 4, v14"); a(f"v_add_u32 v14, {sT3}, v14")
    a(f"v_lshl_add_u32 v15, v10, 4, {sT3}")
    a(f"s_lshl_b32 {sT0}, {sW}, 13")
    a(f"s_lshl_b32 {sT1}, {sJ}, 12"); a(f"s_and_b32 {sT1}, {sT1}, 0x4000"); a(f"s_xor_b32 {sT1}, {sT1}, {sT0}")
    a(f"v_add_u32 v18, {sT1}, {vL16}"); a(f"v_add_u32 v18, {O_LDS}, v18")
    a(f"v_add_u32 v19, {O_LDS}, {vL16}")
    a(f"s_lshl_b32 {sT4}, {sR32}, 15"); a(f"s_add_u32 {sT4}, {sT4}, {sT0}")
    a(f"s_add_u32 {sT5}, {sT0}, {WS_KV}")
    a(f"s_add_u32 {sT6}, {sT2}, {WS_Z}")
    a("v_lshlrev_b32 v44, 8, v0")
    a(WAITVM("wo0")); a("s_barrier")
    for t in range(16):
        a(f"ds_read_b64_tr_b16 {ac(4*t,2)}, v8 offset:{t*4096}")
        a(f"ds_read_b64_tr_b16 {ac(4*t+2,2)}, v8 offset:{t*4096+512}")
    a(WAITVM("wo1")); a("s_barrier")
    a(SCOPE_BEGIN())
    a(f"s_cmp_lg_u32 {sW}, 1"); a("s_cbranch_scc1 L_arr2")
    a(G.arrive(1))
    a(RAW("L_arr2:"))
    a(SCOPE_END())
    for t in range(16):
        a(f"ds_read_b64_tr_b16 {ac(64+4*t,2)}, v9 offset:{t*4096}")
        a(f"ds_read_b64_tr_b16 {ac(64+4*t+2,2)}, v9 offset:{t*4096+512}")
    a(WAITLG0())
    G.stamp('wo', ('t4', 'all'))
    a(SCOPE_BEGIN())
    a(f"s_cmp_lg_u32 {sW}, 0"); a("s_cbranch_scc1 L_rel")
    a(f"s_lshl_b32 {sT0}, {sXC}, 12"); a(f"s_add_u32 {sT0}, {sT0}, {WS_BAR}")
    a("s_mov_b64 exec, 0xffff")
    G.spin('v40', 'v44', WS, sT0, 0xffff, 16)
    a("s_mov_b64 exec, -1")
    a(RAW("L_rel:"))
    a(SCOPE_END())
    a("s_barrier")
    G.stamp('sync1', ('t4', 'all'))
    KV, PQ, ZR, WR, FR, DD, OF, MA, BF = 48, 80, 112, 120, 128, 136, 168, 176, 192
    a(f"s_mov_b32 m0, {sT3}")
    a(f"s_add_u32 {sT0}, {sT5}, 4096"); a(f"s_add_u32 {sT1}, {sT4}, 4096")
    a(f"buffer_load_dwordx4 v13, {WS}, {sT6} offen sc1 lds", "zw")
    for i in range(8):
        a(f"buffer_load_dwordx4 {v(KV+4*i,4)}, v12, {WS}, {sT5 if i < 4 else sT0} offen offset:{(i&3)*1024} sc1")
        a(f"buffer_load_dwordx4 {v(PQ+4*i,4)}, {vL16}, {WS}, {sT4 if i < 4 else sT1} offen offset:{(i&3)*1024} sc1")
    a(WAITVM("zw"))
    def zrd(i): return [f"ds_read_b128 {v(ZR+4*(i&1),4)}, v14 offset:{i*128}"]
    def wrd(i): return [f"ds_read_b128 {v(WR+4*(i&1),4)}, v15 offset:{i*128+64}"]
    def prep(i):
        f = FR + 4*(i&1); z = ZR + 4*(i&1); k = KV + 4*i
        return [f"v_cvt_pk_bf16_f32 v{f+2}, v{z}, v{z+1}", f"v_cvt_pk_bf16_f32 v{f+3}, v{z+2}, v{z+3}",
                f"v_cvt_pk_bf16_f32 v{f}, v{k}, v{k+1}", f"v_cvt_pk_bf16_f32 v{f+1}, v{k+2}, v{k+3}"]
    def swp(i):
        f = FR + 4*(i&1)
        return [f"v_permlane16_swap_b32 v{f}, v{f+2}", f"v_permlane16_swap_b32 v{f+1}, v{f+3}"]
    def mf(i): return [f"{M32} {v(DD+16*(i&1),16)}, {v(FR+4*(i&1),4)}, {v(PQ+4*i,4)}, 0"]
    def epi(i):
        d = DD + 16*(i&1); o = OF + 4*(i&1)
        r = [f"v_add_f32 v{d+8}, s54, v{d+8}", f"v_rcp_f32 v{d+8}, v{d+8}"]
        r2 = []
        for j in range(4):
            r2 += [f"v_mul_f32 v{d+2*j}, v{d+2*j}, v{d+8}", f"v_mul_f32 v{d+2*j+1}, v{d+2*j+1}, v{d+8}",
                   f"v_cvt_pk_bf16_f32 v{o+j}, v{d+2*j}, v{d+2*j+1}"]
        r3 = [f"ds_write_b128 v18, {v(o,4)} offset:{i*1024}",
              f"{M32} {v(MA,16)}, {v(WR+4*(i&1),4)}, {v(o,4)}, {'0' if i == 0 else v(MA,16)}"]
        return r, r2, r3
    a(zrd(0)); a(zrd(1)); a(wrd(0))
    a(prep(0)); a(swp(0)); a(mf(0))
    for i in range(8):
        r, r2, r3 = epi(i)
        if i < 7:
            a(prep(i+1))
            if i < 6: a(zrd(i+2))
            a(wrd(i+1))
            a(swp(i+1))
        a(r)
        if i < 7: a(mf(i+1))
        a(r2); a(r3)
    a(SCOPE_BEGIN())
    a(f"s_cmp_lg_u32 {sW}, 0"); a("s_cbranch_scc1 L_rel2")
    a(f"s_lshl_b32 {sT0}, {sXC}, 12"); a(f"s_add_u32 {sT0}, {sT0}, {WS_BAR + 32768}")
    a("s_mov_b64 exec, 0xffff")
    G.spin('v40', 'v44', WS, sT0, 0xffff, 16)
    a("s_mov_b64 exec, -1")
    a(RAW("L_rel2:"))
    a(SCOPE_END())
    a(f"s_lshl_b32 {sT0}, {sW}, 8"); a(f"s_add_u32 {sT0}, {sT0}, {MP_LDS}")
    a(f"v_add_u32 v44, {sT0}, {vL4}")
    a(f"v_add_u32 v45, {MP_LDS}, {vL4}")
    a(f"ds_write_b32 v44, v{MA}")
    a(WAITLG0()); a("s_barrier")
    G.stamp('o', ('t4', 'all'))
    A4 = 24
    def brd(t): return I(f"ds_read_b128 {v(BF+4*(t%5),4)}, v19 offset:{t*1024}")
    main = IL([f"{M32} {v(A4,16)}, {ac(4*t,4)}, {v(BF+4*(t%5),4)}, {v(A4,16)}" for t in range(32)])
    for t in range(4): a(brd(t))
    dense = []
    for t in range(28):
        it = [brd(t+4)]
        if t == 0: it += IL([f"ds_read2st64_b32 v[48:49], v45 offset0:0 offset1:1", f"ds_read2st64_b32 v[50:51], v45 offset0:2 offset1:3"])
        if t == 8: it += IL(["v_add_f32 v48, v48, v49", "v_add_f32 v50, v50, v51", "v_add_f32 v48, v48, v50", "v_add_f32 v42, v42, v48"])
        if t == 10: it += IL([f"s_lshl2_add_u32 {sT0}, {sC4}, {sW}", f"s_lshl4_add_u32 {sT0}, {sR32}, {sT0}",
                              f"s_lshl_b32 {sT1}, {sT0}, 11", f"s_add_u32 {sT1}, {sT1}, {WS_HC}",
                              f"s_lshl_b32 {sT2}, {sT0}, 7", f"s_add_u32 {sT2}, {sT2}, {WS_SSQ}",
                              f"s_lshl_b32 {sT3}, {sT0}, 9", f"s_add_u32 {sT3}, {sT3}, {WS_FLG}"])
        if t == 13: it += IL([f"s_lshl_b32 {sT4}, {sR32}, 7", f"s_add_u32 {sT4}, {sT4}, {WS_MEAN}",
                              f"v_lshl_add_u32 v44, v10, 28, {vL4}",
                              f"s_and_b32 {sT5}, {sT0}, 15", f"s_lshl_b32 {sT5}, {sT5}, 26", f"v_add_u32 v45, {sT5}, v44"])
        dense.append((t, it, t+2))
    G.w13done = G.o.get('w13early', 2); G.w2done = 0
    pre = [x for nb in range(G.w13done) for x in w13_dma(nb, nb, [0, 1], "wpre")]
    a(weave2(main, 5, dense, pre))
    G.stamp('wogemm', ('t4',))
    a(f"buffer_store_dword v42, v45, {WS}, {sT4} offen sc1")
    HF = 52
    for g in range(8):
        a(f"v_pk_add_f32 {v(A4+2*g,2)}, {v(A4+2*g,2)}, v[48:49] op_sel_hi:[1,0] neg_lo:[0,1] neg_hi:[0,1]")
        a(f"v_cvt_pk_bf16_f32 v{HF+g}, v{A4+2*g}, v{A4+2*g+1}")
        if g == 3: a(f"buffer_store_dwordx4 {v(HF,4)}, {vL16}, {WS}, {sT1} offen sc1")
    a(f"buffer_store_dwordx4 {v(HF+4,4)}, {vL16}, {WS}, {sT1} offen offset:1024 sc1")
    a(f"v_pk_mul_f32 v[50:51], {v(A4,2)}, {v(A4,2)}")
    for g in range(1, 8): a(f"v_pk_fma_f32 v[50:51], {v(A4+2*g,2)}, {v(A4+2*g,2)}, v[50:51]")
    a("v_add_f32 v50, v50, v51"); a("v_mov_b32 v51, v50")
    a("v_permlane32_swap_b32 v50, v51")
    a("v_add_f32 v50, v50, v51")
    a(f"buffer_store_dword v50, v44, {WS}, {sT2} offen sc1", "hc")
    a(f"v_add_u32 {vL16H}, 4096, {vL16}")
    a("s_barrier")
    a(WAITVM("hc"))
    a(f"buffer_store_dword v41, {vL0}, {WS}, {sT3} offen sc1")
    G.stamp('t4end', ('t4', 'all'))

H, ACC, WF = 128, 64, 44
sHH = [[f"s{8+4*t+m}" for m in range(4)] for t in range(2)]
sW2 = [[f"s{16+4*f+m}" for m in range(4)] for f in range(2)]
sHC, sHCB, sHCO, sSSQ, sHST, sF3, sPL, sRES = 's24', 's25', 's26', 's27', 's28', 's29', 's30', 's31'
sMEAN, sOUT, sF2, sWG0, sWG1 = 's40', 's41', 's42', 's43', 's53'
vL16H = 'v11'
STG = [(0, 1, 2), (3, 4), (5,), (6,)]
ORDER = [(mm, nb) for st in STG for mm in range(4) for nb in st]
FOFF = [128, 256, 384, 4]

def prep56(G):
    r = [f"s_lshl_b32 {sF2}, {sRB5}, 13", f"s_add_u32 {sF2}, {sF2}, {WS_FLG}",
         f"s_lshl_b32 {sHCB}, {sRB5}, 15", f"s_add_u32 {sHCB}, {sHCB}, {WS_HC}", f"s_lshl_b32 {sHCO}, {sC4}, 13" if G.o.get('roth') else f"s_mov_b32 {sHCO}, 0",
         f"s_lshl_b32 {sSSQ}, {sRB5}, 11", f"s_add_u32 {sSSQ}, {sSSQ}, {WS_SSQ}",
         f"s_mul_i32 {sHST}, {sRB5}, 112", f"s_mul_i32 {sT0}, {sM5}, 7", f"s_add_u32 {sHST}, {sHST}, {sT0}",
         f"s_lshl_b32 {sHST}, {sHST}, 10", f"s_add_u32 {sHST}, {sHST}, {WS_HH}",
         f"s_lshl4_add_u32 {sF3}, {sRB5}, {sM5}", f"s_lshl_b32 {sF3}, {sF3}, 9", f"s_add_u32 {sF3}, {sF3}, {WS_FLG}",
         f"s_lshl3_add_u32 {sPL}, {sP6}, {sW}", f"s_lshl_b32 {sPL}, {sPL}, 11", f"s_add_u32 {sPL}, {sPL}, {WS_FLG}",
         f"s_lshr_b32 {sT0}, {sW}, 1", f"s_lshl1_add_u32 {sT0}, {sP6}, {sT0}",
         f"s_and_b32 {sT1}, {sW}, 1", f"s_lshl1_add_u32 {sT1}, {sN8}, {sT1}",
         f"s_lshl4_add_u32 {sRES}, {sT0}, {sT1}", f"s_lshl_b32 {sRES}, {sRES}, 11", f"s_add_u32 {sRES}, {sRES}, {WS_HC}",
         f"s_lshl_b32 {sMEAN}, {sT0}, 7", f"s_add_u32 {sMEAN}, {sMEAN}, {WS_MEAN}",
         f"s_lshl_b32 {sOUT}, {sT0}, 15", f"s_lshl_b32 {sT2}, {sT1}, 6", f"s_add_u32 {sOUT}, {sOUT}, {sT2}",
         f"s_mul_i32 {sT2}, {sW}, 28672", f"s_xor_b32 {sT7}, {sP6}, {sN8}", f"s_and_b32 {sT7}, {sT7}, {3 if G.o.get('rot6') else 0}"]
    for t in range(2):
        r += [f"s_mul_i32 {sF0}, {sT0}, 114688", f"s_add_u32 {sF0}, {sF0}, {sT2}", f"s_add_u32 {sF0}, {sF0}, {WS_HH}",
              f"s_mul_i32 {sF1}, {sT1}, 114688", f"s_add_u32 {sF1}, {sF1}, {sT2}", f"s_add_u32 {sF1}, {sF1}, {WS_W2P}"]
        for m in range(4):
            r += [f"s_xor_b32 {sHC}, {sT7}, {m}", f"s_mul_i32 {sHC}, {sHC}, 7168", f"s_add_u32 {sHH[t][m]}, {sF0}, {sHC}", f"s_add_u32 {sW2[t][m]}, {sF1}, {sHC}"]
        r += [f"s_xor_b32 {sT0}, {sT0}, 1", f"s_xor_b32 {sT1}, {sT1}, 1"]
    return IL(r)

def w2ld(f, j):
    mm, nb = ORDER[j]
    return I(f"buffer_load_dwordx4 {ac(W2R(f, j),4)}, {vL16 if nb < 4 else vL16H}, {WS}, {sW2[f][mm]} offen offset:{(nb&3)*1024} sc1")
def W2R(f, j):
    i = 2*j + f
    return 128 + 4*i if i < 24 else 4*(i - 24)

def phase_t56(G):
    a = G.a; o = G.o
    NPB = o.get('npb', 4)
    NW2 = o.get('nw2', 0)
    done = G.w13done
    a([x for nb in range(done, NPB) for x in w13_dma(nb, nb, [0, 1], "wpre")])
    w2all = [w2ld(f, j) for j in range(28) for f in range(2)]
    a(w2all[G.w2done:NW2])
    a(f"v_lshlrev_b32 v12, 9, v0")
    a(f"v_add_u32 v8, 0x10000, {vL16}"); a(f"v_add_u32 v9, 0x20000, {vL16}")
    a(WAITVM("wpre")); a("s_barrier")
    G.stamp('w13', ('t5',))
    a("s_mov_b64 exec, 0xffff")
    G.spin('v40', 'v12', WS, sF2, 0xffff, 1)
    a("s_mov_b64 exec, -1")
    G.stamp('sync2', ('t5', 'all'))
    def hld(k):
        r = []
        if k % 4 == 0: r.append(I(f"s_add_u32 {sHC}, {sHCB}, {sHCO}"))
        r.append(I(f"buffer_load_dwordx4 {v(H+4*k,4)}, {vL16}, {WS}, {sHC} offen offset:{(k&3)*1024} sc1"))
        if k % 4 == 1: r.append(I(f"s_add_u32 {sHCO}, {sHCO}, 4096"))
        if k % 4 == 2: r.append(I(f"s_and_b32 {sHCO}, {sHCO}, 0x7fff"))
        return r
    accof = lambda nb: ACC + 16 * (nb % 4)
    seq = [(nb, k) for k in range(32) for nb in range(3)] + [(nb, k) for nb in range(3, 7) for k in range(32)]
    def wrd(n):
        nb, k = seq[n]; off = (nb % 5) * 32768 + k * 1024
        return I(f"ds_read_b128 {v(WF+4*(n%5),4)}, {[vL16,'v8','v9'][off >> 16]} offset:{off & 0xffff}")
    OWN = 64
    accs = {(0, 0): v(OWN, 16), (1, 0): v(112, 16), (0, 1): ac(224, 16), (1, 1): ac(240, 16)}
    raw = {(1, 0): ('v', 112), (0, 1): ('a', 224), (1, 1): ('a', 240)}
    M = []
    for n in range(224):
        nb, k = seq[n]; c = v(accof(nb), 16)
        M.append(I(f"{M32} {c}, {v(WF+4*(n%5),4)}, {v(H+4*k,4)}, {'0' if k == 0 else c}"))
    def mm6(j, f, t):
        c = accs[(f, t)]; first = j == 0 and (f, t) != (0, 0)
        return I(f"{M32} {c}, {ac(W2R(f, j),4)}, {v(H+8*(j%16)+4*t,4)}, {'0' if first else c}")
    NK = 24
    for j in range(NK): M += [mm6(j, 1, 0), mm6(j, 0, 0), mm6(j, 0, 1), mm6(j, 1, 1)]
    blocks = [(1, 0), (0, 1), (1, 1), (0, 0)]
    for (f, t) in blocks: M += [mm6(j, f, t) for j in range(NK, 28)]
    T, HO = 24, 32
    def epi(nb):
        d = accof(nb); ho = HO + 4*(nb & 1); r = []
        for j in range(0, 8, 2):
            r += [f"v_mul_f32 v{T}, v{d+j}, v20", f"v_mul_f32 v{T+1}, v{d+j+1}, v20",
                  f"v_exp_f32 v{T}, v{T}", f"v_exp_f32 v{T+1}, v{T+1}",
                  f"v_mul_f32 v{T+2}, v{d+j}, v{d+8+j}", f"v_mul_f32 v{T+3}, v{d+j+1}, v{d+9+j}",
                  f"v_fma_f32 v{T}, v{T}, v21, v21", f"v_fma_f32 v{T+1}, v{T+1}, v21, v21",
                  f"v_rcp_f32 v{T}, v{T}", f"v_rcp_f32 v{T+1}, v{T+1}",
                  f"v_mul_f32 v{T+2}, v{T+2}, v{T}", f"v_mul_f32 v{T+3}, v{T+3}, v{T+1}",
                  f"v_cvt_pk_bf16_f32 v{ho+j//2}, v{T+2}, v{T+3}"]
        r.append(I(f"buffer_store_dwordx4 {v(ho,4)}, {vL16 if nb < 4 else vL16H}, {WS}, {sHST} offen offset:{(nb&3)*1024} sc1", f"hh{nb}"))
        return IL(r)
    ssq = IL([f"buffer_load_dwordx4 v[24:27], {vL16}, {WS}, {sSSQ} offen sc1", f"buffer_load_dwordx4 v[28:31], {vL16}, {WS}, {sSSQ} offen offset:1024 sc1"])
    st = [f"v_add_f32 v{24+i}, v{24+i}, v{28+i}" for i in range(4)]
    st += [f"v_add_f32_dpp v{24+i}, v{24+i}, v{24+i} row_ror:8 row_mask:0xf bank_mask:0xf" for i in range(4)]
    for sw in ('16', '32'):
        st += [f"v_mov_b32 v{28+i}, v{24+i}" for i in range(4)]
        st += [f"v_permlane{sw}_swap_b32 v{24+i}, v{28+i}" for i in range(4)]
        st += [f"v_add_f32 v{24+i}, v{24+i}, v{28+i}" for i in range(4)]
    st += ["v_and_b32 v29, 28, v0"] + [f"ds_bpermute_b32 v{32+i}, v29, v{24+i}" for i in range(4)]
    st += ["v_and_b32 v28, 1, v0", "v_cmp_eq_u32 vcc, 1, v28", "v_and_b32 v28, 2, v0", "v_mov_b32 v30, 0x3727c5ac",
           "v_cndmask_b32 v32, v32, v33, vcc", "v_cndmask_b32 v34, v34, v35, vcc", "v_cmp_eq_u32 vcc, 2, v28", "s_nop 1",
           "v_cndmask_b32 v32, v32, v34, vcc", "v_fmamk_f32 v21, v32, 0x3b000000, v30", "v_rsq_f32 v20, v21", "s_nop 0", "v_mul_f32 v20, 0xbfb8aa3b, v20"]
    stat = IL(st)
    misc = IL(["v_and_b32 v12, 3, v0", "v_bfe_u32 v13, v0, 2, 1", "v_lshl_add_u32 v12, v13, 4, v12", "v_lshlrev_b32 v12, 9, v12",
               "v_and_b32 v13, 31, v0", "v_lshlrev_b32 v14, 2, v13", "v_lshlrev_b32 v13, 10, v13", "v_lshl_add_u32 v13, v10, 4, v13"] +
              [x for b in (1, 2, 3) for x in (f"s_xor_b32 {sT6}, {sW}, {b}", f"s_mul_i32 {sT6}, {sT6}, 12288", f"s_add_u32 {sT6}, {sT6}, {65536 + (b-1)*4096}", f"v_add_u32 v{1+b}, {sT6}, {vL16}")] +
              [f"s_mul_i32 {sT6}, {sW}, 12288", f"v_add_u32 v5, {sT6}, v8"])
    resld = IL([f"buffer_load_dwordx4 v[112:115], {vL16}, {WS}, {sRES} offen sc1", f"buffer_load_dwordx4 v[116:119], {vL16}, {WS}, {sRES} offen offset:1024 sc1",
                f"buffer_load_dword v42, v14, {WS}, {sMEAN} offen sc1"])
    resv = []
    for g in range(8):
        resv += [f"v_lshlrev_b32 v{OWN+2*g}, 16, v{112+g}", f"v_and_b32 v{OWN+2*g+1}, 0xffff0000, v{112+g}",
                 f"v_add_f32 v{OWN+2*g}, v{OWN+2*g}, v42", f"v_add_f32 v{OWN+2*g+1}, v{OWN+2*g+1}, v42"]
    resv = IL(resv)
    def flag(s_): return [WAITVM(f"hh{STG[s_][-1]}"), I(f"buffer_store_dword v41, {vL0}, {WS}, {sF3} offen offset:{FOFF[s_]} sc1")]
    def poll(s_): return [I(f"s_add_u32 {sT5}, {sPL}, {FOFF[s_]}"), I(f"buffer_load_dword v40, v12, {WS}, {sT5} offen sc1")]
    def hh(j, t):
        mm, nb = ORDER[j]
        return [I(f"buffer_load_dwordx4 {v(H+8*(j%16)+4*t,4)}, {vL16 if nb < 4 else vL16H}, {WS}, {sHH[t][mm]} offen offset:{(nb&3)*1024} sc1")]
    def dump(f, t):
        k, r = raw[(f, t)]; b = 2*t + f
        return IL([f"ds_write_b128 v{1+b}, {k}[{r+4*q}:{r+4*q+3}] offset:{q*1024}" for q in range(4)])
    LEAD = 4
    NPRE = o.get('hpre', 10)
    FL = o.get('fl', [166, 202, 234, 264])
    CK = o.get('ck', [190, 238, 270, 288])
    LH = o.get('lh', 20)
    PL = o.get('pl', 12)
    Q = [(0, hld(k)) for k in range(NPRE, 32)] + [(0, [x]) for x in ssq]
    Q += [(0, g) for nb in range(NPB, 5) for g in groups(w13_dma(nb, nb, [0, 1], f"w{nb}"))]
    hi = [(97, g) for nb in (5, 6) for g in groups(w13_dma(nb, nb - 5, [0, 1], "w56"))]
    lo = [(0, [x]) for x in w2all[max(NW2, G.w2done):]]
    jst = [0, 12, 20, 24]
    stage_of = lambda j: max(i for i in range(4) if jst[i] <= j)
    def hfree(j, t):
        return 192 + 2*j + t if j < 16 else 224 + 4*(j - 16) + 3
    HQ = [(CK[0], [x]) for x in resld] + [(max(CK[stage_of(j)], hfree(j, t)), hh(j, t), j) for j in range(28) for t in range(2)]
    ex = {3: misc, 60: stat, 99: epi(0) + epi(1), 129: epi(2) + epi(3), 163: epi(4), 195: epi(5), 210: resv, 227: epi(6)}
    exdl = {96: 60, 128: 99, 160: 129, 192: 163, 224: 210}
    bar = {}
    if NPB <= 3: bar[90] = "w3"
    if NPB <= 4: bar[96 if NPB <= 3 else 96] = None
    bar[96] = None
    if NPB <= 4: bar[122] = "w4"
    bar[154] = "w56"
    for k in range(NPRE): a(hld(k))
    for n in range(LEAD): a(wrd(n))
    pend = []; lastv = -9; w2out = max(NW2, G.w2done); hhout = 0
    for n, m in enumerate(M):
        if n in exdl:
            a(pend); pend = []
        if n >= 224:
            j = (n - 224) // 4 if n < 224 + 4*NK else 27
            while w2out < 2*j + 2: a(lo.pop(0)[1]); w2out += 1; lastv = n
            assert hhout >= 2*j + 2 or not HQ, (n, hhout)
        a(m)
        used = 1
        if n + LEAD < 224: a(wrd(n + LEAD)); used += 1
        if n in bar:
            if bar[n]: a(WAITVM(bar[n]))
            a("s_barrier"); used += 2
        if n in FL: a(flag(FL.index(n))); used += 2; lastv = n
        if n + PL in CK: a(poll(CK.index(n + PL))); used += 2; lastv = n
        if n in CK: G.spin('v40', 'v12', WS, sT5, 0xff, 1, pre=True); used += 5
        if n - lastv >= 2:
            g = None
            j_need = (n + 24 - 224) // 4
            if HQ and HQ[0][0] <= n and not (lo and w2out < 2*j_need + 2):
                g = HQ.pop(0); hhout += len(g) > 2
            elif Q: g = Q.pop(0)
            elif hi and hi[0][0] <= n: g = hi.pop(0)
            elif lo: g = lo.pop(0); w2out += 1
            if g: a(g[1]); used += len(g[1]); lastv = n
        jl = min(27, (n + LH - 224) // 4)
        while lo and w2out < 2*jl + 2: a(lo.pop(0)[1]); w2out += 1; lastv = n; used += 1
        while HQ and HQ[0][0] <= n and hhout < 2*jl + 2:
            g = HQ.pop(0); hhout += len(g) > 2; a(g[1]); lastv = n; used += 1
        if n in ex: pend += ex[n]
        while pend and used + icost(pend[0]) <= 6:
            x = pend.pop(0); a(x); used += icost(x)
            if isinstance(x, I) and x.kind == 'vmem': lastv = n
        if n >= 224 + 4*NK + 4 and (n - 224 - 4*NK) % 4 == 3: a(dump(*blocks[(n - 224 - 4*NK) // 4 - 1]))
        for nm, pos in (('phA', 95), ('b3', 127), ('b4', 159), ('b5', 191), ('b6', 223), ('s8', 255), ('s16', 287), ('s24', 319)):
            if n == pos: G.stamp(nm, ('t5', 'all') if nm in ('phA', 'b6') else ('t5',))
    assert not (Q or hi or lo or HQ or pend)
    a(WAITLG0()); a("s_barrier")
    G.stamp('t6gemm', ('t5', 'all'))
    for b in range(3):
        for q in range(4): a(f"ds_read_b128 {v(H+16*b+4*q,4)}, v5 offset:{b*4096+q*1024}")
    OUTF = 24
    for q in range(4):
        for h in range(2):
            r = 4*q + 2*h
            a(f"v_pk_add_f32 {v(OWN+r,2)}, {v(OWN+r,2)}, {v(H+r,2)}")
            a(f"v_pk_add_f32 {v(H+16+r,2)}, {v(H+16+r,2)}, {v(H+32+r,2)}")
            a(f"v_pk_add_f32 {v(OWN+r,2)}, {v(OWN+r,2)}, {v(H+16+r,2)}")
            a(f"v_cvt_pk_bf16_f32 v{OUTF+2*q+h}, v{OWN+r}, v{OWN+r+1}")
        if q & 1:
            b0 = OUTF + 2*(q-1)
            a(f"v_permlane32_swap_b32 v{b0}, v{b0+2}"); a(f"v_permlane32_swap_b32 v{b0+1}, v{b0+3}")
            a(f"buffer_store_dwordx4 {v(b0,4)}, v13, {srd(SOUT)}, {sOUT} offen offset:{(q>>1)*32}")
```

```python
import sys
from asmlib import *

NAME = "sequential_preLN__linear_attn_block__glu_gated_swiglu__prompt"
WS_PQ   = 0x0000000
WS_HC   = 0x0200000
WS_HH   = 0x0400000
WS_W13P = 0x0B00000
WS_W2P  = 0x0E80000
WS_KV   = 0x1040000
WS_Z    = 0x1048000
WS_BAR  = 0x1110000
WS_WBAR = 0x1050000
WS_MEAN = 0x1052000
WS_SSQ  = 0x1060000
WS_FLG  = 0x1080000
WS_TS   = 0x1100000
WS_END  = 0x1200000
OOB = 0x40000000
SPIN = 200000
SX, SWQ, SWO, SW1, SW3, SW2, SOUT, SWS, SDBG = 8, 12, 16, 20, 24, 28, 32, 36, 40
def srd(n): return f"s[{n}:{n+3}]"
WS = srd(SWS)
sW, sR64, sC4, sB, sC8, sS0, sJ, sXC = 's3', 's4', 's5', 's6', 's7', 's44', 's45', 's46'
sT0, sT1, sT2, sT3 = 's47', 's48', 's49', 's50'
sXO, sWOFF = 's51', 's52'
sWR = 's51'
sPK = 's53'
sPKU, sPKS, sPKL = 's52', 's62', 's63'
sEPS, sL2E = 's[54:55]', 's[56:57]'
sM1, sM2, sMV = 's[58:59]', 's[60:61]', 's[62:63]'
sR32, sU, sW2K, sW4K = 's64', 's65', 's66', 's67'
sT4, sT5, sT6, sT7 = 's68', 's69', 's70', 's71'
sERR, sD0 = 's72', 's73'
sD1, sD2, sRB5, sM5 = 's0', 's1', 's58', 's59'
sP6, sN8, sF0, sF1 = 's60', 's61', 's62', 's63'
TS0 = 74
vL16, vL4, vL0 = 'v16', 'v17', 'v43'

def v(a, n=1): return f"v{a}" if n == 1 else f"v[{a}:{a+n-1}]"
def ac(a, n=1): return f"a{a}" if n == 1 else f"a[{a}:{a+n-1}]"
M16 = "v_mfma_f32_16x16x32_bf16"
M32 = "v_mfma_f32_32x32x16_bf16"
def IL(lst): return [I(x) if isinstance(x, str) else x for x in lst]

class G:
    def __init__(self, stop=99, ts=False, opts=None):
        self.L = []; self.stop = stop; self.ts = ts; self.nts = 0; self.tsn = []
        self.o = dict(pfd=2, tsset='all'); self.o.update(opts or {})
        self.nlab = 0
    def a(self, x, tag=None):
        if isinstance(x, list): self.L.extend(IL(x))
        elif isinstance(x, str): self.L.append(I(x, tag))
        else: self.L.append(x)
    def stamp(self, name, sets=('all',)):
        if self.o.get('diag'):
            if name == 'start': self.a(f"s_memrealtime s[{TS0}:{TS0+1}]")
            if name == self.o['diag']: self.a(f"s_memrealtime s[{TS0+2}:{TS0+3}]")
            return
        if self.ts and self.nts < 14 and (self.o['tsset'] in sets or name in ('start', 'end')):
            self.a(f"{'s_memtime' if self.o.get('clk') else 's_memrealtime'} s[{TS0+2*self.nts}:{TS0+2*self.nts+1}]")
            self.tsn.append(name); self.nts += 1
    def spin(self, vdst, vaddr, rsrc, soff, mask, target, pre=False, cmp='gt'):
        a = self.a; self.nlab += 1; n = self.nlab
        ld = f"buffer_load_dword {vdst}, {vaddr}, {rsrc}, {soff} offen sc1"
        if not pre: a(ld)
        a(f"v_cmp_gt_u32 vcc, {target}, {vdst}")
        a(f"s_and_b32 vcc_lo, vcc_lo, {hex(mask)}")
        a(SCOPE_BEGIN())
        a(f"s_cbranch_scc0 L_ok{n}")
        a(f"s_mov_b32 {sT7}, {SPIN}")
        if self.ts: a(f"s_bitset1_b32 {sERR}, {8 + n}")
        a(RAW(f"L_spin{n}:"))
        a(ld)
        a(f"v_cmp_gt_u32 vcc, {target}, {vdst}")
        a(f"s_sub_u32 {sT7}, {sT7}, 1")
        a(f"s_cbranch_scc1 L_fail{n}")
        a(f"s_and_b32 vcc_lo, vcc_lo, {hex(mask)}")
        a(f"s_cbranch_scc1 L_spin{n}")
        a(f"s_branch L_ok{n}")
        a(RAW(f"L_fail{n}:"))
        a(f"s_add_u32 {sERR}, {sERR}, 1")
        a(RAW(f"L_ok{n}:"))
        a(SCOPE_END())

    def prologue(self):
        a = self.a
        self.stamp('start')
        a("s_cmp_ge_u32 s2, 256")
        a("s_cbranch_scc1 L_end")
        for n, off in [(SX, 0), (SWQ, 8), (SWS, 72), (SWO, 16), (SDBG, 64), (SW1, 32), (SW3, 40), (SW2, 48), (SOUT, 56)]:
            a(f"s_load_dwordx2 s[{n}:{n+1}], s[0:1], {off}")
        a("s_getpc_b64 s[48:49]")
        a(RAW("L_pc:"))
        a("s_lshr_b32 s45, s2, 3")
        a("s_lshl_b32 s47, s45, 11")
        a("v_lshl_add_u32 v14, v0, 3, s47")
        a("v_min_u32 v14, L_end-L_pc, v14")
        a("global_load_dword v15, v14, s[48:49]")
        a("v_lshrrev_b32 v1, 6, v0")
        a("v_and_b32 v0, 63, v0")
        a(f"v_readfirstlane_b32 {sW}, v1")
        for n, sz in [(SX, 2097152), (SWQ, 1572864)]:
            a(f"s_mov_b32 s{n+2}, {sz}")
            a(f"s_mov_b32 s{n+3}, 0x20000")
        a(f"s_and_b32 {sXC}, s2, 7")
        a(f"s_and_b32 {sB}, s2, 1")
        a(f"s_and_b32 {sC4}, {sJ}, 3")
        a(f"s_lshr_b32 {sT0}, {sJ}, 2")
        a(f"s_lshr_b32 {sT1}, {sXC}, 1")
        a(f"s_lshl3_add_u32 {sR64}, {sT1}, {sT0}")
        a(f"s_lshl2_add_u32 {sC8}, {sB}, {sC4}")
        a(f"s_lshl1_add_u32 {sS0}, {sC4}, {sT0}")
        a(f"s_add_u32 {sS0}, {sS0}, {sB}")
        a(f"s_and_b32 {sS0}, {sS0}, 7")
        a("v_lshrrev_b32 v18, 3, v0")
        a("v_lshrrev_b32 v19, 4, v0")
        a("v_and_b32 v1, 7, v0")
        a(f"s_lshl_b32 {sT0}, {sR64}, 6")
        a(f"s_lshl_b32 {sT1}, {sW}, 4")
        a(f"s_add_u32 {sT0}, {sT0}, {sT1}")
        a(f"v_add_u32 v2, {sT0}, v18")
        a("v_xor_b32 v3, v1, v19")
        a("v_lshlrev_b32 v3, 4, v3")
        a("v_lshl_add_u32 v2, v2, 10, v3")
        a("v_xor_b32 v3, 64, v2")
        a("v_add_u32 v3, 7168, v3")
        a(f"v_add_u32 v4, {sT1}, v18")
        a("v_mul_u32_u24 v4, 3072, v4")
        a("v_and_b32 v5, 1, v19")
        a("v_lshlrev_b32 v5, 1, v5")
        a("v_xor_b32 v5, v5, v1")
        a("v_lshl_add_u32 v6, v5, 4, v4")
        a(f"s_lshl_b32 {sT2}, {sC8}, 7")
        a(f"v_add_u32 v6, {sT2}, v6")
        a("v_xor_b32 v7, 64, v6")
        a("v_add_u32 v7, 22528, v7")
        a("v_add_u32 v4, 1024, v6")
        a("v_add_u32 v5, 1024, v7")
        a(f"s_lshl_b32 {sXO}, {sS0}, 7")
        a(f"s_mul_i32 {sWOFF}, {sS0}, 196608")
        a(f"s_lshl_b32 {sW2K}, {sW}, 11")
        a(f"s_lshl_b32 {sW4K}, {sW}, 12")

    def dma_stage(self, t):
        o = self._dma_stage(t)
        fx = self.o.get('ntx', ''); fw = self.o.get('ntw', '')
        return [I(x.text.replace(' lds', f" {fx if srd(SX) in x.text else fw} lds"), x.tag) if x.kind == 'vmem' else x for x in o]
    def _dma_stage(self, t):
        slot = t % 6; tg = f"st{t}"
        return [I(f"s_add_u32 m0, {sW2K}, {t*8192}"),
                I(f"buffer_load_dwordx4 v2, {srd(SX)}, {sXO} offen lds", tg),
                I(f"buffer_load_dwordx4 v3, {srd(SX)}, {sXO} offen offset:1024 lds", tg),
                I(f"s_add_u32 m0, {sW4K}, {65536 + slot*16384}"),
                I(f"buffer_load_dwordx4 v4, {srd(SWQ)}, {sWOFF} offen lds", tg),
                I(f"s_add_u32 {sXO}, {sXO}, 128"),
                I(f"buffer_load_dwordx4 v4, {srd(SWQ)}, {sWOFF} offen offset:1024 lds", tg),
                I(f"s_and_b32 {sXO}, {sXO}, 1023"),
                I(f"buffer_load_dwordx4 v5, {srd(SWQ)}, {sWOFF} offen offset:2048 lds", tg),
                I(f"buffer_load_dwordx4 v5, {srd(SWQ)}, {sWOFF} offen offset:3072 lds", tg),
                I(f"s_mul_i32 {sWOFF}, {sXO}, 1536")]
    def dma_q(self, t):
        tg = f"q{t}"
        return [I(f"s_add_u32 m0, {sW4K}, {65536 + (2 + t//2)*16384 + (t & 1)*1024}"),
                I(f"s_add_u32 {sXO}, {sXO}, 128"),
                I(f"buffer_load_dwordx4 v6, {srd(SWQ)}, {sWOFF} offen {self.o.get('ntw','')} lds", tg),
                I(f"s_and_b32 {sXO}, {sXO}, 1023"),
                I(f"buffer_load_dwordx4 v7, {srd(SWQ)}, {sWOFF} offen offset:2048 {self.o.get('ntw','')} lds", tg),
                I(f"s_mul_i32 {sWOFF}, {sXO}, 1536")]
    def wo_prep(self):
        return IL([f"s_lshr_b32 {sWR}, {sJ}, 2", f"s_and_b32 {sD1}, {sWR}, 1", f"s_lshl2_add_u32 {sD0}, {sD1}, {sW}", f"s_lshl_b32 {sD0}, {sD0}, 16",
                   f"s_lshr_b32 {sWR}, {sWR}, 1", f"s_lshl_b32 {sWR}, {sWR}, 12", f"s_lshl_b32 {sD1}, {sW}, 14"])
    def dma_wo(self, half):
        o = []
        if half: o += IL([f"s_xor_b32 {sD0}, {sD0}, 262144", f"s_add_u32 {sD1}, {sD1}, 98304"])
        for g in range(4):
            o.append(I(f"s_add_u32 m0, {sD1}, {sWR}"))
            o.append(I(f"s_lshl2_add_u32 {sD2}, {sWR}, {sD0}"))
            for n in range(4):
                o.append(I(f"buffer_load_dwordx4 v{2+n}, {srd(SWO)}, {sD2} offen offset:{n*1024} {self.o.get('ntwo','')} lds", f"wo{half}"))
                if n == 0: o.append(I(f"s_add_u32 {sWR}, {sWR}, 4096"))
                if n == 1: o.append(I(f"s_and_b32 {sWR}, {sWR}, 0x3fff"))
        return o
    def arrive(self, b):
        return IL([f"s_lshr_b32 {sT0}, s2, 4", f"s_lshl_b32 {sT0}, {sT0}, 8", f"s_add_u32 {sT0}, {sT0}, {WS_BAR + b*32768}",
                   "v_lshlrev_b32 v40, 12, v0", "s_mov_b64 exec, 0xff",
                   f"buffer_atomic_add v41, v40, {WS}, {sT0} offen sc1", "s_mov_b64 exec, -1"])

    def p1(self):
        a = self.a
        PFD = self.o['pfd']
        ONES = 20
        aK, aV, aQ, cK, cV, cQ, aS, aSS = 24, 44, 60, 76, 80, 84, 88, 92
        FS = [96, 112]
        STAT = 65536
        self.stamp('karg', ('p1',))
        a(self.dma_stage(0))
        for n, sz in [(SWO, 524288), (SW1, 1835008), (SW3, 1835008), (SW2, 1835008), (SOUT, 2097152), (SWS, WS_END), (SDBG, 256)]:
            a(f"s_mov_b32 s{n+2}, {sz}")
            a(f"s_mov_b32 s{n+3}, 0x20000")
        a(f"v_lshlrev_b32 {vL16}, 4, v0")
        a(f"v_lshlrev_b32 {vL4}, 2, v0")
        a(f"s_lshl2_add_u32 {sU}, s2, {sW}")
        a(f"s_lshl1_add_u32 {sR32}, {sR64}, {sB}")
        a(f"s_mov_b32 {sERR}, 0")
        for i in range(4): a(f"v_mov_b32 v{164+i}, 0")
        a(SCOPE_BEGIN())
        a("s_cmp_ge_u32 s2, 8")
        a("s_cbranch_scc1 L_nozero")
        a(f"s_lshl_b32 {sT0}, {sU}, 10")
        a(f"s_add_u32 {sT0}, {sT0}, {WS_KV}")
        a(f"buffer_store_dwordx4 v[164:167], {vL16}, {WS}, {sT0} offen sc1")
        a(f"s_lshl_b32 {sT0}, {sU}, 7")
        a(f"s_add_u32 {sT0}, {sT0}, {WS_Z}")
        a(f"s_lshl_b32 {sT1}, {sU}, 11")
        a(f"s_add_u32 {sT1}, {sT1}, {WS_BAR}")
        a("v_lshlrev_b32 v14, 8, v0")
        a("s_mov_b64 exec, 0xff")
        a(f"buffer_store_dwordx4 v[164:167], {vL16}, {WS}, {sT0} offen sc1")
        a(f"buffer_store_dword v164, v14, {WS}, {sT1} offen sc1")
        a("s_mov_b64 exec, -1")
        a(RAW("L_nozero:"))
        a(SCOPE_END())
        for i in range(4): a(f"v_mov_b32 v{ONES+i}, 0x3f803f80")
        a("v_and_b32 v14, 15, v0")
        a("v_lshrrev_b32 v10, 1, v14")
        a("v_xor_b32 v10, v10, v19")
        a("v_lshlrev_b32 v10, 4, v10")
        a("v_lshl_add_u32 v10, v14, 7, v10")
        a("v_xor_b32 v11, 64, v10")
        a(f"v_add_u32 v12, {sW2K}, v10")
        a(f"v_add_u32 v13, {sW2K}, v11")
        a("v_bfe_u32 v8, v0, 3, 2")
        a(f"v_xor_b32 v8, {sW}, v8")
        a("v_lshlrev_b32 v8, 5, v8")
        a("v_lshl_add_u32 v8, v19, 11, v8")
        a("v_bfe_u32 v9, v0, 2, 2")
        a("v_lshl_add_u32 v8, v9, 7, v8")
        a("v_and_b32 v9, 3, v0")
        a("v_lshl_add_u32 v8, v9, 3, v8")
        a("v_add_u32 v8, 0x10000, v8")
        a("v_add_u32 v9, 0x10000, v8")
        a("s_mov_b32 s54, 0x358637bd"); a("s_mov_b32 s55, 0x358637bd")
        a("s_mov_b32 s56, 0x3fb8aa3b"); a("s_mov_b32 s57, 0x3fb8aa3b")
        a("s_mov_b32 s58, 0xaaaaaaaa"); a("s_mov_b32 s59, 0xaaaaaaaa")
        a("s_mov_b32 s60, 0xcccccccc"); a("s_mov_b32 s61, 0xcccccccc")
        a("s_mov_b32 s62, 0x00f0000f"); a("s_mov_b32 s63, 0xf0000f00")
        a("v_cmp_eq_u32 vcc, 0, v0")
        a(f"v_mov_b32 {vL0}, {OOB}")
        a(f"v_cndmask_b32 {vL0}, {vL0}, v164, vcc")
        for t in range(1, PFD): a(self.dma_stage(t))

        XA = lambda t, ks, bi: (2*t + ks) * 16 + 4 * bi
        def reads(t, ks):
            f = FS[ks]; slot = t % 6
            base = 'v8' if slot < 4 else 'v9'; so = (slot % 4) * 16384 + ks * 8192
            xa = 'v10' if ks == 0 else 'v11'; xs = 'v12' if ks == 0 else 'v13'
            r = [f"ds_read_b64_tr_b16 {v(f+4,2)}, {base} offset:{so}",
                 f"ds_read_b64_tr_b16 {v(f+6,2)}, {base} offset:{so+512}",
                 f"ds_read_b128 {ac(XA(t,ks,0),4)}, {xa} offset:{t*8192}",
                 f"ds_read_b64_tr_b16 {v(f+8,2)}, {base} offset:{so+1024}",
                 f"ds_read_b64_tr_b16 {v(f+10,2)}, {base} offset:{so+1536}"]
            for bi in range(1, 4): r.append(f"ds_read_b128 {ac(XA(t,ks,bi),4)}, {xa} offset:{t*8192+bi*2048}")
            r.append(f"ds_read_b128 {v(f,4)}, {xs} offset:{t*8192}")
            return IL(r)
        def mfmas(t, ks):
            f = FS[ks]; first = (t == 0 and ks == 0)
            c = lambda r: '0' if first else v(r, 4)
            m = [f"{M16} {v(cK,4)}, {v(ONES,4)}, {v(f+4,4)}, {c(cK)}",
                 f"{M16} {v(aK,4)}, {ac(XA(t,ks,0),4)}, {v(f+4,4)}, {c(aK)}",
                 f"{M16} {v(cV,4)}, {v(ONES,4)}, {v(f+8,4)}, {c(cV)}",
                 f"{M16} {v(aV,4)}, {ac(XA(t,ks,0),4)}, {v(f+8,4)}, {c(aV)}"]
            for bi in range(1, 4):
                m.append(f"{M16} {v(aK+4*bi,4)}, {ac(XA(t,ks,bi),4)}, {v(f+4,4)}, {c(aK+4*bi)}")
                m.append(f"{M16} {v(aV+4*bi,4)}, {ac(XA(t,ks,bi),4)}, {v(f+8,4)}, {c(aV+4*bi)}")
            m.append(f"{M16} {v(aS,4)}, {v(ONES,4)}, {v(f,4)}, {c(aS)}")
            m.append(f"{M16} {v(aSS,4)}, {v(f,4)}, {v(f,4)}, {c(aSS)}")
            return IL(m)
        sched = {t: [] for t in range(9)}
        for i in range(PFD, 8): sched[i - PFD] += self.dma_stage(i)
        for i in range(8): sched[min(8, max(8 - PFD + i // 3, 3 + i // 2))] += self.dma_q(i)
        RX = 128
        resid = IL([
            "v_and_b32 v160, 31, v0", f"s_lshl_b32 {sT0}, {sB}, 5", f"v_add_u32 v160, {sT0}, v160",
            f"s_lshr_b32 {sT1}, {sW}, 1", f"s_lshl1_add_u32 {sT0}, {sC4}, {sT1}", f"s_sub_u32 {sT0}, {sT0}, {sS0}",
            f"s_and_b32 {sT0}, {sT0}, 7", f"s_lshl_b32 {sT0}, {sT0}, 13", f"s_and_b32 {sT1}, {sW}, 1", f"s_lshl_b32 {sT1}, {sT1}, 2",
            "v_bfe_u32 v161, v160, 1, 3", f"v_xor_b32 v161, {sT1}, v161", "v_lshlrev_b32 v161, 4, v161",
            "v_lshl_add_u32 v161, v160, 7, v161", "v_lshrrev_b32 v162, 5, v0", "v_lshl_add_u32 v161, v162, 3, v161",
            f"v_add_u32 v161, {sT0}, v161", "v_xor_b32 v162, 16, v161", "v_xor_b32 v163, 32, v161", "v_xor_b32 v168, 48, v161",
            "v_lshlrev_b32 v160, 2, v160", f"v_add_u32 v160, {STAT+256}, v160"])
        residrd = IL([f"ds_read_b64 {v(RX+2*g,2)}, {['v161','v162','v163','v168'][g]}" for g in range(4)])
        for t in range(8):
            a(WAITVM(f"st{t}"))
            a(WAITLG0())
            a("s_barrier")
            if t in (0, 1, 2, 4, 6, 7): self.stamp(f'st{t}', ('p1',) if t else ('p1', 'all'))
            if t == 1:
                a(SCOPE_BEGIN())
                a(f"s_cmp_ge_u32 {sU}, 32"); a("s_cbranch_scc1 L_noz")
                a(f"s_cmp_lg_u32 {sW}, 0"); a("s_cbranch_scc1 L_noz")
                a(f"buffer_store_dword v{ONES}, {vL0}, {srd(SDBG)}, {sU} offen sc1")
                a(RAW("L_noz:"))
                a(SCOPE_END())
            sp = list(sched[t])
            if t == 7: sp.append(I(f"buffer_load_dword v171, {vL4}, {srd(SDBG)}, 0 offen sc1"))
            if t == 0:
                a(reads(0, 0))
                a(weave2(mfmas(0, 0), 2, [(0, reads(0, 1))], sp))
            else:
                extra = resid[:11] if t == 5 else resid[11:] if t == 6 else []
                a(weave2(mfmas(t-1, 1) + mfmas(t, 0), 2, [(0, reads(t, 0), 10), (12, reads(t, 1) + extra)], sp))
        a(weave2(mfmas(7, 1), 2, [(0, residrd)], sched[8]))
        self.stamp('kvgemm', ('p1', 'all'))
        a(f"s_lshl_b32 {sT0}, {sW}, 6")
        a(f"s_add_u32 {sT0}, {sT0}, {STAT}")
        a(f"v_lshl_add_u32 v163, v14, 2, {sT0}")
        a(f"v_mul_f32 v162, 0x3b000000, v{aS}")
        a(f"v_cndmask_b32 v161, v{aSS}, v{aSS+1}, {sM1}")
        a(f"v_cndmask_b32 v168, v{aSS+2}, v{aSS+3}, {sM1}")
        a("v_mul_f32 v169, v162, v162")
        a(f"v_cndmask_b32 v161, v161, v168, {sM2}")
        a("v_subrev_f32 v169, 0x3727c5ac, v169")
        a("v_mul_f32 v161, 0x3b000000, v161")
        a("v_sub_f32 v161, v161, v169")
        a("v_max_f32 v161, 0x3727c5ac, v161")
        a("v_rsq_f32 v161, v161")
        a(f"s_mov_b64 exec, {sMV}")
        a("ds_write2_b32 v163, v161, v162 offset0:0 offset1:64")
        a("s_mov_b64 exec, -1")
        a(f"v_lshlrev_b32 v163, 4, v19")
        a(f"v_add_u32 v163, {STAT}, v163")
        a(WAITLG0())
        a("s_barrier")
        R, Mn = 176, 192
        for bi in range(4):
            a(f"ds_read_b128 {v(Mn+4*bi,4)}, v163 offset:{256+bi*64}")
            a(f"ds_read_b128 {v(R+4*bi,4)}, v163 offset:{bi*64}")
        a("ds_read_b32 v42, v160")
        NT = self.o.get('ntpk', 'nt')
        raw = IL([
            f"s_add_u32 {sT2}, s{SWO}, 8192", f"s_addc_u32 {sT3}, s{SWO+1}, 0",
            f"s_sub_u32 {sPKU}, s2, 32",
            f"s_cselect_b32 s{SW1}, s{SWO}, s{SW1}", f"s_cselect_b32 s{SW1+1}, s{SWO+1}, s{SW1+1}", f"s_cselect_b32 s{SW1+2}, 524288, s{SW1+2}",
            f"s_cselect_b32 s{SW3}, {sT2}, s{SW3}", f"s_cselect_b32 s{SW3+1}, {sT3}, s{SW3+1}", f"s_cselect_b32 s{SW3+2}, {524288-8192}, s{SW3+2}",
            f"s_cselect_b32 {sT4}, {OOB}, 0", f"s_movk_i32 {sT5}, 3584", f"s_cselect_b32 {sT5}, 128, {sT5}", f"s_movk_i32 {sT3}, {8*3584-1024}", f"s_cselect_b32 {sT3}, 3072, {sT3}",
            f"s_cselect_b32 {sPKU}, 0, {sPKU}",
            f"s_mul_i32 {sPKS}, {sPKU}, 9363", f"s_lshr_b32 {sPKS}, {sPKS}, 16",
            f"s_mul_i32 {sT0}, {sPKS}, 7", f"s_sub_u32 {sT0}, {sPKU}, {sT0}", f"s_lshl2_add_u32 {sPKL}, {sT0}, {sW}",
            f"s_mul_i32 {sT0}, {sPKS}, {16*3584}", f"s_lshl_b32 {sT1}, {sPKL}, 7", f"s_add_u32 {sT0}, {sT0}, {sT1}",
            f"s_lshl4_add_u32 {sT1}, s2, {sW}", f"s_lshl_b32 {sT1}, {sT1}, 10",
            "s_cmp_lt_u32 s2, 32", f"s_cselect_b32 {sT0}, {sT1}, {sT0}", f"s_add_u32 {sT1}, {sT0}, {sT3}",
            f"v_mul_u32_u24 v172, {sT5}, v18", "v_lshl_add_u32 v172, v1, 4, v172",
            f"s_mul_i32 {sPK}, {sW}, 6144", f"s_add_u32 {sPK}, {sPK}, {STAT+1024}",
            f"s_mov_b32 m0, {sPK}", f"v_lshl_add_u32 v174, v1, 4, {sT4}",
            I(f"buffer_load_dwordx4 v172, {srd(SW1)}, {sT0} offen {NT} lds", "pk"),
            I(f"buffer_load_dwordx4 v172, {srd(SW1)}, {sT1} offen offset:1024 {NT} lds", "pk"),
            f"s_add_u32 m0, {sPK}, 2048", "v_lshl_add_u32 v173, v18, 10, v174",
            I(f"buffer_load_dwordx4 v172, {srd(SW3)}, {sT0} offen {NT} lds", "pk"),
            I(f"buffer_load_dwordx4 v172, {srd(SW3)}, {sT1} offen offset:1024 {NT} lds", "pk"),
            f"s_lshl2_add_u32 {sPKU}, {sPKU}, {sW}",
            f"s_lshr_b32 {sT0}, {sPKU}, 3", f"s_lshl_b32 {sT0}, {sT0}, 14", f"s_and_b32 {sT1}, {sPKU}, 7", f"s_lshl_b32 {sT1}, {sT1}, 7",
            f"s_add_u32 {sT0}, {sT0}, {sT1}", f"s_add_u32 m0, {sPK}, 4096", f"s_add_u32 {sT1}, {sT0}, {8192-1024}",
            I(f"buffer_load_dwordx4 v173, {srd(SW2)}, {sT0} offen {NT} lds", "pk"),
            I(f"buffer_load_dwordx4 v173, {srd(SW2)}, {sT1} offen offset:1024 {NT} lds", "pk")])
        PKf, VVf = 96, 104
        T = 208
        ep = []
        for bi in range(4):
            for h in range(2):
                r = 4*bi + 2*h
                ep += [f"v_pk_fma_f32 {v(aK+r,2)}, {v(Mn+r,2)}, {v(cK,2)}, {v(aK+r,2)} neg_lo:[1,0,0] neg_hi:[1,0,0]",
                       f"v_pk_fma_f32 {v(aV+r,2)}, {v(Mn+r,2)}, {v(cV,2)}, {v(aV+r,2)} neg_lo:[1,0,0] neg_hi:[1,0,0]",
                       f"v_pk_fma_f32 {v(aK+r,2)}, {v(aK+r,2)}, {v(R+r,2)}, {sEPS}",
                       f"v_pk_mul_f32 {v(aV+r,2)}, {v(aV+r,2)}, {v(R+r,2)}",
                       f"v_pk_mul_f32 {v(T,2)}, {v(aK+r,2)}, {sL2E}",
                       f"v_max_f32 v{aK+r}, s54, v{aK+r}",
                       f"v_exp_f32 v{T}, v{T} clamp",
                       f"v_exp_f32 v{T+1}, v{T+1} clamp",
                       f"v_max_f32 v{aK+r+1}, s54, v{aK+r+1}",
                       f"v_cvt_pk_bf16_f32 v{VVf+2*bi+h}, v{aV+r}, v{aV+r+1}",
                       f"v_pk_add_f32 {v(aK+r,2)}, {v(aK+r,2)}, {v(T,2)}",
                       f"v_cvt_pk_bf16_f32 v{PKf+2*bi+h}, v{aK+r}, v{aK+r+1}"]
        gs = groups(raw)
        a(gs[0])
        a(weave2(IL(ep), 20, [], [x for g in gs[1:6] for x in g], 4, 80))
        KVD, ZD = 24, 28
        a(f"{M16} {v(KVD,4)}, {v(VVf,4)}, {v(PKf,4)}, 0")
        a(f"{M16} {v(ZD,4)}, {v(ONES,4)}, {v(PKf,4)}, 0")
        a(f"{M16} {v(KVD,4)}, {v(VVf+4,4)}, {v(PKf+4,4)}, {v(KVD,4)}")
        a(f"{M16} {v(ZD,4)}, {v(ONES,4)}, {v(PKf+4,4)}, {v(ZD,4)}")
        a("v_bfe_u32 v161, v0, 2, 1")
        a("v_lshlrev_b32 v161, 9, v161")
        a("v_bfe_u32 v162, v0, 3, 1")
        a("v_lshl_add_u32 v161, v162, 6, v161")
        a("v_and_b32 v162, 3, v0")
        a("v_lshl_add_u32 v161, v162, 2, v161")
        a("v_lshl_add_u32 v161, v19, 4, v161")
        a(f"v_lshl_add_u32 v162, v19, 28, {vL4}")
        a(f"s_lshl2_add_u32 {sT6}, {sC8}, {sW}")
        a(f"s_lshl_b32 {sT2}, {sT6}, 10")
        a(f"s_add_u32 {sT2}, {sT2}, {WS_KV}")
        a(f"s_lshl_b32 {sT3}, {sT6}, 7")
        a(f"s_add_u32 {sT3}, {sT3}, {WS_Z}")
        self.spin('v171', vL4, srd(SDBG), '0', 0xff, 1, pre=True)
        for i in range(4):
            a(f"buffer_atomic_add_f32 v{KVD+i}, v161, {WS}, {sT2} offen offset:{i*128}")
        a(f"buffer_atomic_add_f32 v{ZD}, v162, {WS}, {sT3} offen")
        self.stamp('atom', ('p1', 'all'))
        a(WAITVM("q7"))
        a("s_barrier")
        QW = [112, 116, 120]
        def qreads(n):
            t, ks = n // 2, n % 2
            f = QW[n % 3]; slot = 2 + t // 2
            base = 'v8' if slot < 4 else 'v9'; so = (slot % 4) * 16384 + ks * 8192 + (t & 1) * 1024
            return IL([f"ds_read_b64_tr_b16 {v(f,2)}, {base} offset:{so}", f"ds_read_b64_tr_b16 {v(f+2,2)}, {base} offset:{so+512}"])
        def qmf(n):
            f = QW[n % 3]; c = lambda r: '0' if n == 0 else v(r, 4)
            m = [f"{M16} {v(cQ,4)}, {v(f,4)}, {v(ONES,4)}, {c(cQ)}"]
            for bi in range(4): m.append(f"{M16} {v(aQ+4*bi,4)}, {v(f,4)}, {ac(16*n+4*bi,4)}, {c(aQ+4*bi)}")
            return IL(m)
        PB = 212
        woprep = IL(["v_lshlrev_b32 v2, 10, v19", f"s_lshl_b32 {sD0}, {sC4}, 8", f"v_lshl_add_u32 v2, v14, 4, v2", f"v_add_u32 v2, {sD0}, v2"] +
                    [x for n in (1, 2, 3) for x in (f"v_xor_b32 v{2+n}, {n*64}, v2", f"v_add_u32 v{2+n}, {n*3072}, v{2+n}")]) + self.wo_prep()
        flagz = IL([f"s_lshl_b32 {sD2}, {sU}, 9", f"s_add_u32 {sD2}, {sD2}, {WS_FLG}", "v_lshlrev_b32 v175, 3, v0",
                    f"buffer_store_dwordx2 v[164:165], v175, {WS}, {sD2} offen sc1"])
        pkprep = IL([
            "v_bfe_u32 v172, v0, 2, 2", "v_bfe_u32 v173, v0, 5, 1", "v_lshl_add_u32 v172, v173, 2, v172", "v_lshlrev_b32 v172, 7, v172",
            "v_and_b32 v173, 3, v0", "v_lshl_add_u32 v172, v173, 3, v172", f"v_add_u32 v172, {sPK}, v172",
            "v_bfe_u32 v174, v0, 4, 1", "v_lshl_add_u32 v173, v174, 5, v172", "v_lshl_add_u32 v172, v174, 11, v172",
            f"v_add_u32 v174, {sT4}, {vL16}",
            f"s_lshl_b32 {sT2}, {sPKL}, 17", f"s_lshl_b32 {sT1}, {sPKS}, 10",
            f"s_add_u32 {sT2}, {sT2}, {sT1}", f"s_add_u32 {sT2}, {sT2}, {WS_W13P}",
            f"s_and_b32 {sT3}, {sPKU}, 7", f"s_mul_i32 {sT3}, {sT3}, {2*114688}", f"s_lshr_b32 {sT1}, {sPKU}, 3", f"s_lshl_b32 {sT1}, {sT1}, 10",
            f"s_add_u32 {sT3}, {sT3}, {sT1}", f"s_add_u32 {sT3}, {sT3}, {WS_W2P}",
            f"v_lshlrev_b32 v163, 2, v14", f"v_add_u32 v163, {STAT}, v163",
            f"s_lshl_b32 {sT0}, {sR64}, 16", f"s_lshl_b32 {sT1}, {sT6}, 10", f"s_add_u32 {sT0}, {sT0}, {sT1}", f"s_add_u32 {sT1}, {sT0}, 32768",
            "v_mov_b32 v41, 1"] +
            [f"ds_read2_b32 {v(R+2*bi,2)}, v163 offset0:{16*bi} offset1:{64+16*bi}" for bi in range(4)])
        A4 = 24
        t4i = []
        for g in range(8):
            t4i += [f"v_lshlrev_b32 v{A4+2*g}, 16, v{RX+g}", f"v_and_b32 v{A4+2*g+1}, 0xffff0000, v{RX+g}",
                    f"v_sub_f32 v{A4+2*g}, v{A4+2*g}, v42", f"v_sub_f32 v{A4+2*g+1}, v{A4+2*g+1}, v42"]
        fill = woprep + pkprep + IL(t4i)
        main = []; dense = []
        for n in range(16):
            if n + 2 < 16: dense.append((5*n, qreads(n+2), 5*n+7))
            dense.append((5*n, fill[6*n:6*n+6]))
            main += qmf(n)
        assert len(fill) <= 96
        a(qreads(0)); a(qreads(1))
        wo0 = groups(self.dma_wo(0)); wo1 = self.dma_wo(1)
        NQ = self.o.get('woq', 4)
        a(weave2(main, 2, dense, flagz + [x for g in wo0[:NQ] for x in g], 76 - 4*(NQ+1), 76))
        self.stamp('qgemm', ('p1', 'all'))
        QF = 96
        ep = []
        for bi in range(4):
            for h in range(2):
                r = 4*bi + 2*h
                ep += [f"v_pk_fma_f32 {v(aQ+r,2)}, {v(cQ+2*h,2)}, {v(R+2*bi,2)}, {v(aQ+r,2)} op_sel:[0,1,0] op_sel_hi:[1,1,1] neg_lo:[1,0,0] neg_hi:[1,0,0]",
                       f"v_pk_fma_f32 {v(aQ+r,2)}, {v(aQ+r,2)}, {v(R+2*bi,2)}, {sEPS} op_sel_hi:[1,0,1]",
                       f"v_pk_mul_f32 {v(T,2)}, {v(aQ+r,2)}, {sL2E}",
                       f"v_max_f32 v{aQ+r}, s54, v{aQ+r}",
                       f"v_exp_f32 v{T}, v{T} clamp",
                       f"v_exp_f32 v{T+1}, v{T+1} clamp",
                       f"v_max_f32 v{aQ+r+1}, s54, v{aQ+r+1}",
                       f"v_pk_add_f32 {v(aQ+r,2)}, {v(aQ+r,2)}, {v(T,2)}",
                       f"v_cvt_pk_bf16_f32 v{QF+2*bi+h}, v{aQ+r}, v{aQ+r+1}"]
            if bi & 1:
                b0 = QF + 2*(bi-1)
                ep += [f"v_permlane16_swap_b32 v{b0}, v{b0+2}", f"v_permlane16_swap_b32 v{b0+1}, v{b0+3}",
                       I(f"buffer_store_dwordx4 {v(b0,4)}, {vL16}, {WS}, {sT0 if bi == 1 else sT1} offen sc1", "pq")]
        a(ep)
        self.stamp('pqst', ('p1',))
        a(WAITVM("pk"))
        WB, WD = 236, 44
        a(SCOPE_BEGIN())
        a("s_cmp_ge_u32 s2, 32"); a("s_cbranch_scc1 L_nowb")
        a("v_bfe_u32 v160, v0, 2, 2"); a(f"v_lshl_add_u32 v160, v160, 10, {sPK}")
        a("v_and_b32 v161, 3, v0"); a("v_lshl_add_u32 v160, v161, 4, v160"); a("v_lshl_add_u32 v160, v19, 6, v160")
        for n in range(4): a(f"ds_read_b128 {v(WB+4*n,4)}, v160 offset:{n*256}")
        a(f"s_lshl_b32 {sT0}, s2, 7")
        a(f"s_and_b32 {sT1}, {sW}, 1"); a(f"s_lshl4_add_u32 {sT0}, {sT1}, {sT0}")
        a(f"s_lshr_b32 {sT1}, {sW}, 1"); a(f"s_lshl3_add_u32 {sT0}, {sT1}, {sT0}")
        a(f"s_add_u32 {sT0}, {sT0}, {WS_WBAR}")
        a("v_lshlrev_b32 v160, 1, v19"); a("v_lshl_add_u32 v160, v14, 26, v160")
        for n in range(4): a(f"{M16} {v(WD,4)}, {v(WB+4*n,4)}, {v(ONES,4)}, {'0' if n == 0 else v(WD,4)}")
        a(f"v_pk_add_f32 {v(WD,2)}, {v(WD,2)}, {v(WD+2,2)}")
        a(f"v_add_f32 v{WD}, v{WD}, v{WD+1}")
        a(f"v_mul_f32 v{WD}, 0x3b000000, v{WD}")
        a(f"v_cvt_pk_bf16_f32 v{WD}, v{WD}, v{WD}")
        a(f"buffer_store_short v{WD}, v160, {WS}, {sT0} offen sc1")
        a(WAITVM0())
        a(RAW("L_nowb:"))
        a(SCOPE_END())
        for g in range(4):
            a([f"ds_read_b64_tr_b16 {v(PB+4*g,2)}, v172 offset:{g*32}", f"ds_read_b64_tr_b16 {v(PB+4*g+2,2)}, v172 offset:{g*32+1024}"])
        for f in range(2):
            a([f"ds_read_b64_tr_b16 {v(PB+16+4*f,2)}, v173 offset:{4096+f*64}", f"ds_read_b64_tr_b16 {v(PB+16+4*f+2,2)}, v173 offset:{4096+f*64+1024}"])
        pkst = []
        for g in range(4):
            if g: pkst.append(I(f"s_add_u32 {sT2}, {sT2}, 32768"))
            pkst.append(I(f"buffer_store_dwordx4 {v(PB+4*g,4)}, v174, {WS}, {sT2} offen sc1"))
        pkst += IL([f"buffer_store_dwordx4 {v(PB+16,4)}, v174, {WS}, {sT3} offen sc1", f"s_add_u32 {sT3}, {sT3}, 114688",
                    f"buffer_store_dwordx4 {v(PB+20,4)}, v174, {WS}, {sT3} offen sc1"])
        tail = groups(pkst) + wo0[NQ:]
        NB = self.o.get('prearr', 6)
        a([x for g in tail[:NB] for x in g])
        a(WAITVM("pq"))
        a(WAITLG0())
        a("s_barrier")
        self.stamp('p1end', ('p1', 'all'))
        self.tail = [x for g in tail[NB:] for x in g] + wo1

    def finish(self):
        a = self.a
        self.stamp('end')
        if self.o.get('diag'):
            a(WAITVM0()); a(WAITLG0())
            if 'diagx' in self.o:
                a(f"s_lshr_b32 {sT0}, {self.o['diagx']}, {sXC}"); a(f"s_and_b32 {sT0}, {sT0}, 1"); a("s_cbranch_scc0 L_end")
            a(f"s_add_u32 s{TS0+2}, s{TS0+2}, 4000")
            a(RAW("L_diag:"))
            a(f"s_memrealtime s[{TS0+4}:{TS0+5}]")
            a("s_waitcnt lgkmcnt(0)")
            a(f"s_sub_u32 s{TS0+6}, s{TS0+4}, s{TS0+2}")
            a(f"s_cmp_lt_i32 s{TS0+6}, 0")
            a("s_cbranch_scc1 L_diag")
        if self.ts:
            a(WAITLG0())
            for i in range(self.nts):
                a(f"v_writelane_b32 v4, s{TS0+2*i}, {i}")
            a(f"v_writelane_b32 v4, {sERR}, 15")
            a(f"s_lshl_b32 {sT0}, {sU}, 6")
            a(f"s_add_u32 {sT0}, {sT0}, {WS_TS}")
            a("s_mov_b64 exec, 0xffff")
            a(f"buffer_store_dword v4, {vL4}, {WS}, {sT0} offen")
        a(RAW("L_end:"))
        a("s_endpgm")

    def build(self):
        self.prologue()
        self.p1()
        if self.stop > 1:
            import gen2
            gen2.phase_t4(self)
            if self.stop > 2: gen2.phase_t56(self)
        self.finish()
        f = Fin().run(self.L)
        hdr = open('header.txt').read()
        k = NAME + "_kernel"
        txt = hdr + f"; @launch grid=(256,1,1) block=(256,1,1) lds=163840\n"
        txt += f'.amdgcn_target "amdgcn-amd-amdhsa--gfx950"\n.text\n.globl {k}\n.p2align 8\n.type {k},@function\n{k}:\n'
        txt += "\n".join(f.out) + "\n"
        txt += f""".section .rodata,"a"
.p2align 6
.amdhsa_kernel {k}
  .amdhsa_next_free_vgpr 512
  .amdhsa_next_free_sgpr 102
  .amdhsa_accum_offset 256
  .amdhsa_group_segment_fixed_size 0
  .amdhsa_kernarg_size 80
  .amdhsa_user_sgpr_count 2
  .amdhsa_user_sgpr_kernarg_segment_ptr 1
  .amdhsa_system_sgpr_workgroup_id_x 1
  .amdhsa_float_denorm_mode_32 3
.end_amdhsa_kernel
"""
        self.fin = f
        return txt

if __name__ == "__main__":
    import argparse, json
    ap = argparse.ArgumentParser()
    ap.add_argument('-o', default='k.s'); ap.add_argument('--stop', type=int, default=99); ap.add_argument('--ts', action='store_true')
    ap.add_argument('--opts', default='{}')
    ar = ap.parse_args()
    g = G(ar.stop, ar.ts, json.loads(ar.opts))
    t = g.build()
    open(ar.o, 'w').write(t)
    open(ar.o + '.ts', 'w').write(json.dumps(g.tsn))
    print(f"{len(g.fin.out)} lines, nops {g.fin.nops}, waits {g.fin.waits}")
```
